```python
import torch

def _softmax(x, axis=-1):
    return torch.softmax(x, dim=axis)
def _gelu(x):
    return torch.nn.functional.gelu(x, approximate="tanh")
def _silu(x):
    return torch.nn.functional.silu(x)
def _sigmoid(x):
    return torch.sigmoid(x)
def _layernorm(x, axis=-1, eps=1e-5):
    m = x.mean(dim=axis, keepdim=True)
    v = x.var(dim=axis, keepdim=True, unbiased=False)
    return (x - m) / torch.sqrt(v + eps)
def _scatter_add(tgt, idx, src, axis=0):
    return tgt.clone().index_add_(axis, idx, src)
def _segment_sum(src, seg, n):
    out = torch.zeros((n,) + src.shape[1:], dtype=src.dtype)
    return out.index_add_(0, seg, src)
def _pad(x, pw):
    flat = tuple(v for pair in reversed(pw) for v in pair)
    return torch.nn.functional.pad(x, flat)

kernel_name = 'concat_heads__compressed_kv_cla__sliding_block_cached__decode'

def setup_inputs():

    _w = (lambda a: (lambda t: t.to(torch.bfloat16) if t.is_floating_point() else t)(torch.as_tensor(a)))
    def _A_setup():
        B, H, Sq, Sk, D, M = 1, 32, 1, 8192, 128, 576
        Dc = 4 * D
        return {
            "x": _w((lambda *s: torch.randn(*s, dtype=torch.bfloat16) * 3.2)(B, Sq, M)),
            "c_kv": _w((lambda *s: torch.randn(*s, dtype=torch.bfloat16) * 0.1)(B, Sk, Dc)),
            "w_q": _w((lambda *s: torch.randn(*s, dtype=torch.bfloat16) * 6.4)(M, H, D) * (M ** -0.5)),
            "w_uk": _w((lambda *s: torch.randn(*s, dtype=torch.bfloat16) * 6.4)(Dc, H, D) * (Dc ** -0.5)),
            "w_uv": _w((lambda *s: torch.randn(*s, dtype=torch.bfloat16) * 0.1)(Dc, H, D) * (Dc ** -0.5)),
            "w_o": _w((lambda *s: torch.randn(*s, dtype=torch.bfloat16) * 0.1)(H, D, M) * ((H * D) ** -0.5)),
        }
    _A_in = _A_setup()

    def _B_setup():
        B, Sq, D = 1, 1, 576
        Hq, Hkv, Sk, Dh = 32, 16, 8192, 128
        assert Hq % Hkv == 0, (Hq, Hkv)
        return {
            "x": _w((lambda *s: torch.randn(*s, dtype=torch.bfloat16) * 1.6)(B, Sq, D)),
            "k_cache": _w((lambda *s: torch.randn(*s, dtype=torch.bfloat16) * 1.6)(B, Hkv, Sk, Dh)),
            "v_cache": _w((lambda *s: torch.randn(*s, dtype=torch.bfloat16) * 0.05)(B, Hkv, Sk, Dh)),
            "wq": _w((lambda *s: torch.randn(*s, dtype=torch.bfloat16) * 1.6)(D, Hq * Dh) * (D ** -0.5)),
            "wo": _w((lambda *s: torch.randn(*s, dtype=torch.bfloat16) * 0.05)(Hq * Dh, D) * ((Hq * Dh) ** -0.5)),
        }
    _B_in = _B_setup()

    return {
        "A_x": _A_in["x"],
        "A_c_kv": _A_in["c_kv"],
        "A_w_q": _A_in["w_q"],
        "A_w_uk": _A_in["w_uk"],
        "A_w_uv": _A_in["w_uv"],
        "A_w_o": _A_in["w_o"],
        "B_x": _B_in["x"],
        "B_k_cache": _B_in["k_cache"],
        "B_v_cache": _B_in["v_cache"],
        "B_wq": _B_in["wq"],
        "B_wo": _B_in["wo"],
    }

def reference(A_x, A_c_kv, A_w_q, A_w_uk, A_w_uv, A_w_o, B_x, B_k_cache, B_v_cache, B_wq, B_wo):
    def _A_ref(x, c_kv, w_q, w_uk, w_uv, w_o):
        B, Sq, M = x.shape[0], x.shape[1], x.shape[2]
        Sk = c_kv.shape[1]
        H, D = w_q.shape[1], w_q.shape[2]
        q = torch.einsum("bqm,mhd->bhqd", x, w_q)
        k = torch.einsum("bkc,chd->bhkd", c_kv, w_uk)
        v = torch.einsum("bkc,chd->bhkd", c_kv, w_uv)
        scores = torch.einsum("bhqd,bhkd->bhqk", q, k) * (D ** -0.5)
        off = Sk - Sq
        qi = torch.arange(Sq)[:, None]
        kj = torch.arange(Sk)[None, :]
        cmask = kj <= (qi + off)
        scores = torch.where(cmask[None, None], scores, -1e9)
        p = _softmax(scores, axis=-1)
        ctx = torch.einsum("bhqk,bhkd->bhqd", p, v)
        return torch.einsum("bhqd,hdm->bqm", ctx, w_o)

    def _B_ref(x, k_cache, v_cache, wq, wo):
        B, Sq, D = x.shape
        Hq, Dh = 32, 128
        Hkv, Sk = k_cache.shape[1], k_cache.shape[2]
        W = min(4096, max(256, Sk // 4))
        rep = Hq // Hkv
        q = (lambda x, *d: x.permute(*d))((x @ wq).reshape(B, Sq, Hq, Dh), 0, 2, 1, 3)
        k = (lambda x, n, axis: torch.repeat_interleave(x, n, dim=axis))(k_cache[:, :, Sk - W:, :], rep, axis=1)
        v = (lambda x, n, axis: torch.repeat_interleave(x, n, dim=axis))(v_cache[:, :, Sk - W:, :], rep, axis=1)
        scores = torch.einsum("bhqd,bhkd->bhqk", q, k) * (Dh ** -0.5)
        p = _softmax(scores, axis=-1)
        o = torch.einsum("bhqk,bhkd->bhqd", p, v)
        return (lambda x, *d: x.permute(*d))(o, 0, 2, 1, 3).reshape(B, Sq, Hq * Dh) @ wo

    a = _A_ref(A_x, A_c_kv, A_w_q, A_w_uk, A_w_uv, A_w_o)
    b = _B_ref(B_x, B_k_cache, B_v_cache, B_wq, B_wo)
    return torch.concatenate([a, b], axis=-1)
```

```python
KN = "concat_heads__compressed_kv_cla__sliding_block_cached__decode"
HEADER = open("cdna_kernels/%s.s.ref" % KN).read().split("; Override launch")[0]
class Asm:
    def __init__(self):
        self.L = []; self.n = 0
    def __call__(self, s, *a):
        for line in (s % a if a else s).split("\n"):
            line = line.strip()
            if line: self.L.append(("" if line.endswith(":") else "    ") + line)
    def lab(self, p="L"):
        self.n += 1; return "%s_%d" % (p, self.n)
    def text(self): return "\n".join(self.L) + "\n"
def wrap(body, grid, block, lds, vgpr=256, sgpr=102, accum=None):
    accum = accum or min(256, (vgpr + 3) // 4 * 4)
    return f"""{HEADER}; @launch grid=({grid},1,1) block=({block},1,1) lds={lds}
.amdgcn_target "amdgcn-amd-amdhsa--gfx950"
.text
.globl {KN}_kernel
.p2align 8
.type {KN}_kernel,@function
{KN}_kernel:
{body}
.section .rodata,"a"
.p2align 6
.amdhsa_kernel {KN}_kernel
  .amdhsa_next_free_vgpr {vgpr}
  .amdhsa_next_free_sgpr {sgpr}
  .amdhsa_accum_offset {accum}
  .amdhsa_group_segment_fixed_size 0
  .amdhsa_kernarg_size 112
  .amdhsa_user_sgpr_count 2
  .amdhsa_user_sgpr_kernarg_segment_ptr 1
  .amdhsa_system_sgpr_workgroup_id_x 1
.end_amdhsa_kernel
"""
```

```python
import re
TRANS = ("v_exp_f32","v_log_f32","v_rcp_f32","v_rsq_f32","v_sqrt_f32","v_sin_f32","v_cos_f32")
def regs(tok):
    tok = tok.strip()
    tok = tok.lstrip("-")
    if tok.startswith("abs(") or tok.startswith("|"): tok = tok.strip("|").replace("abs(","").rstrip(")")
    m = re.fullmatch(r"([vsa])\[(\d+):(\d+)\]", tok)
    if m: return {m.group(1)+str(i) for i in range(int(m.group(2)), int(m.group(3))+1)}
    if re.fullmatch(r"[vsa]\d+", tok): return {tok}
    if tok == "vcc": return {"vcc"}
    if tok in ("vcc_lo","vcc_hi"): return {"vcc"}
    if tok in ("exec","exec_lo","exec_hi"): return {"exec"}
    if tok == "m0": return {"m0"}
    return set()
class I:
    def __init__(s, line):
        s.line = line
        t = line.split(";")[0].strip()
        s.label = t.endswith(":")
        s.op = t.split()[0] if t and not s.label else ""
        rest = t[len(s.op):].strip()
        ops = [o.strip() for o in re.split(r",(?![^\[]*\])", rest)] if rest else []
        mods = ""
        if ops:
            parts = ops[-1].split()
            ops[-1] = parts[0]; mods = " ".join(parts[1:])
        s.ops = ops; s.mods = mods
        op = s.op
        s.mfma = op.startswith("v_mfma")
        s.valu = op.startswith("v_") and not s.mfma
        s.dot = op.startswith("v_dot")
        s.trans = any(op.startswith(x) for x in TRANS)
        s.dpp = "_dpp" in op or "row_" in mods or "quad_perm" in mods
        s.perml = op.startswith("v_permlane")
        s.rdl = op.startswith("v_readfirstlane") or op.startswith("v_readlane")
        s.vmem = op.startswith(("buffer_","global_","flat_"))
        s.ds = op.startswith("ds_")
        s.salu = op.startswith("s_")
        s.ldsdma = s.vmem and (" lds" in (" "+mods) or "load_lds" in op)
        R = [regs(o) for o in ops]
        s.w = set(); s.r = set(); s.A=s.B=s.C=set(); s.stdata=set()
        if s.mfma:
            s.w = R[0]; s.A=R[1]; s.B=R[2]; s.C=R[3]; s.r = R[1]|R[2]|R[3]
        elif s.valu:
            s.w = set(R[0]); s.r = set().union(*R[1:]) if len(R)>1 else set()
            if s.perml: s.w = R[0]|R[1]; s.r = R[0]|R[1]
            if op.startswith(("v_fmac","v_dot2c","v_writelane")) or s.dpp: s.r |= R[0]
            if op.startswith(("v_add_co","v_sub_co","v_addc_co","v_subb_co","v_mad_u64")): s.w |= R[1]
            if op.startswith("v_cndmask") and len(ops)==3: s.r |= {"vcc"}
            if op.startswith("v_cmpx"): s.w |= {"exec"}
        elif s.vmem:
            if "store" in op or "atomic" in op:
                s.r = set().union(*R)
                wide = op.endswith(("x3","x4"))
                if wide: s.stdata = R[0] if op.startswith("buffer_") else R[1]
            elif s.ldsdma: s.r = set().union(*R) | {"m0"}
            else: s.w = R[0]; s.r = set().union(*R[1:])
        elif s.ds:
            if op.startswith(("ds_read","ds_bpermute","ds_permute","ds_swizzle")) or "_rtn" in op: s.w = R[0]; s.r = set().union(*R[1:])
            else: s.r = set().union(*R)
        elif s.salu:
            if op.startswith(("s_cmp","s_cbranch","s_branch","s_waitcnt","s_nop","s_barrier","s_endpgm","s_setprio","s_sleep","s_bitcmp")): s.r = set().union(*R) if R else set()
            elif R: s.w = R[0]; s.r = set().union(*R[1:]) if len(R)>1 else set()
            if "saveexec" in op: s.w |= {"exec"}
        s.states = 0 if (s.label or not op) else (int(ops[0])+1 if op=="s_nop" else 1)
def need(p, c):
    n = 0
    vw = {x for x in p.w if x[0] in "va" and x != "vcc"}
    sw = {x for x in p.w if x[0]=="s" or x=="vcc"}
    if p.valu:
        if c.valu and c.dpp and vw & c.r: n = max(n,2)
        if c.perml and vw & c.r: n = max(n,2)
        if c.rdl and vw & c.r: n = max(n,1)
        if c.valu and sw & c.r: n = max(n, 4 if c.rdl or c.op.startswith("v_writelane") else 2)
        if c.vmem and sw & c.r: n = max(n,5)
        if c.salu and sw & c.r and not c.op.startswith("s_cbranch"): n = max(n,1)
        if p.trans and c.valu and not c.trans and vw & c.r: n = max(n,1)
        if p.trans and (c.mfma or c.vmem or c.ds) and vw & c.r: n = max(n,1)
        if c.mfma and vw & c.r: n = max(n,2)
        if "exec" in p.w and (c.dpp): n = max(n,5)
        if "exec" in p.w and (c.mfma or c.rdl or c.perml): n = max(n,4)
        if p.dot:
            if c.op == p.op:
                ab = set().union(*[regs(o) for o in c.ops[1:3]])
                if vw & ab: n = max(n,3)
            elif vw & (c.r | c.w): n = max(n,3)
    if p.salu and "m0" in p.w and (c.ldsdma or "addtid" in c.op): n = max(n,1)
    if p.mfma:
        big = "32x32" in p.op
        if c.mfma:
            if p.w & (c.A|c.B): n = max(n, 12 if big else 8)
            if p.w & c.C and not (p.w == c.C and p.op == c.op): n = max(n, 10 if big else 6)
            if p.w & c.w and not (p.w == c.C and p.op == c.op): n = max(n, 10 if big else 6)
        else:
            if p.w & (c.r | c.w): n = max(n, 12 if big else 8)
            if c.valu and p.C & c.w: n = max(n, 7 if big else 3)
    if p.stdata and p.stdata & c.w: n = max(n, 2)
    return n
def pad(lines, verbose=False):
    out = []; hist = []
    nins = 0
    for line in lines:
        c = I(line)
        if c.op:
            dist = 0; req = 0
            for p in reversed(hist):
                n = need(p, c)
                if n > dist: req = max(req, n - dist)
                dist += p.states
                if dist >= 20: break
            if req:
                nop = I("s_nop %d" % (req-1)); out.append("    s_nop %d" % (req-1)); hist.append(nop); nins += 1
            hist.append(c)
            if c.op in ("s_branch","s_endpgm","s_setpc_b64"): hist = []
        out.append(line)
    return out, nins
def check_branches(lines):
    ins = [I(l) for l in lines]
    lab = {i.line.split(";")[0].strip()[:-1]: k for k, i in enumerate(ins) if i.label}
    probs = []
    for k, b in enumerate(ins):
        if b.op.startswith(("s_cbranch","s_branch")):
            tgt = lab[b.ops[0]]
            hist = []; j = k; d = 0
            while j >= 0 and d < 20:
                if ins[j].op:
                    if j != k and ins[j].op in ("s_branch","s_endpgm"): break
                    hist.insert(0, ins[j]); d += ins[j].states
                j -= 1
            nh = len(hist)
            j = tgt; d = 0
            while j < len(ins) and d < 20:
                c = ins[j]
                if c.op:
                    dist = 0
                    for idx in range(len(hist)-1, -1, -1):
                        p = hist[idx]
                        if idx < nh and need(p, c) > dist: probs.append((p.line, c.line, need(p,c), dist))
                        dist += p.states
                    hist.append(c); d += c.states
                    if c.op in ("s_branch","s_endpgm"): break
                j += 1
    return probs
```

```python
import sys, math
from asmgen import Asm, wrap, KN
import hazard

EPOCH = 0
Q12 = 0x10000
QABS = 0x40000
ST34 = 0x50000
STB = 0x60000
P34 = 0x100000
C45 = 0x400000
OB = 0x480000
O5 = 0x500000
WS_BYTES = 0x600000
STAMP = 128 << 20
X = 131072
A_MX, A_LX, A_P, PS = X + 9216, X + 9728, X + 10240, 272
A_WUV, A_WO = 0, 32768
B_K, B_V, B_Q, B_P, B_FL, B_WO = 0, 65536, X, X + 2048, X + 4096, 0
LDS = 163840
WS, SX, SWQ, SWO, M1, M2, M3, SOUT = ("s[44:47]", "s[48:51]", "s[52:55]", "s[56:59]", "s[60:63]", "s[64:67]", "s[68:71]", "s[72:75]")
sT, sT2, sH, sQ, sHL, sCH, sHH, sROLE, sIDX, sPLO, sPHI, sCNT, sK = ["s%d" % i for i in range(76, 89)]
KSCALE = 0x3E0293EE
import struct
KSCALE = struct.unpack("<I", struct.pack("<f", math.log2(math.e) / math.sqrt(128.0)))[0]
vL, vJ, vG, vFF, v11 = "v1", "v2", "v3", "v10", "v11"
POLL_LIMIT = 1 << 14


def vr(a, n=1):
    return "v%d" % a if n == 1 else "v[%d:%d]" % (a, a + n - 1)


class G(Asm):
    def __init__(s, **o):
        super().__init__()
        s.o = dict(WA=31, WB1=15, WB2=31, stamps=False, pretouch=True, wo_late=False)
        s.o.update(o)
        s.nst = 0

    def stamp(s, k):
        if s.o["stamps"]:
            s("s_memrealtime s[14:15]\ns_waitcnt lgkmcnt(0)\ns_mov_b32 s%d, s14" % (90 + k))

    def srd(s, name, lo, nbytes):
        r = int(name[2:4])
        s(f"s_mov_b32 s{r}, s{lo}\ns_mov_b32 s{r+1}, s{lo+1}\ns_mov_b32 s{r+2}, {nbytes}\ns_mov_b32 s{r+3}, 0x20000")

    def srd_sel(s, name, loA, loB, nbytes):
        r = int(name[2:4])
        s(f"s_cselect_b32 s{r}, s{loA}, s{loB}\ns_cselect_b32 s{r+1}, s{loA+1}, s{loB+1}\ns_mov_b32 s{r+2}, {nbytes}\ns_mov_b32 s{r+3}, 0x20000")

    def epoch(s):
        s(f"s_lshl_b32 s4, {sROLE}, 8\ns_load_dword {sT}, s[40:41], s4")

    def epoch_fin(s):
        s(f"""s_add_u32 {sT}, {sT}, 1
        s_and_b32 s12, {sT}, 2
        s_lshl_b32 s12, s12, 15
        s_and_b32 {sT2}, {sT}, 1
        s_or_b32 {sT2}, {sT2}, s12""")

    def tagcheck(s, dws, T, tmp):
        cur = []
        for k in range(0, len(dws), 2):
            t = tmp[k // 2]
            s(f"v_bitop3_b32 v{t}, v{dws[k]}, v{dws[k+1]}, {T} bitop3:0x7e")
            cur.append(t)
        while len(cur) > 1:
            nxt = []
            i = 0
            while i < len(cur):
                if len(cur) - i >= 3:
                    s(f"v_or3_b32 v{cur[i]}, v{cur[i]}, v{cur[i+1]}, v{cur[i+2]}"); nxt.append(cur[i]); i += 3
                elif len(cur) - i == 2:
                    s(f"v_or_b32 v{cur[i]}, v{cur[i]}, v{cur[i+1]}"); nxt.append(cur[i]); i += 2
                else:
                    nxt.append(cur[i]); i += 1
            cur = nxt
        return cur[0]

    def poll(s, loads, check):
        lp, dn = s.lab("Lp"), s.lab("Ld")
        s(f"s_mov_b32 {sCNT}, {POLL_LIMIT}\n{lp}:")
        loads()
        s("s_waitcnt vmcnt(0)")
        t = check()
        s(f"""v_cmp_ne_u32 vcc, 0, v{t}
        s_cbranch_vccz {dn}
        s_sub_u32 {sCNT}, {sCNT}, 1
        s_cbranch_scc0 {lp}
        {dn}:""")

    def ldsflag_wait(s, addr_v, val, tmpv):
        lp, dn = s.lab("Lf"), s.lab("Lg")
        s(f"""s_mov_b32 {sCNT}, {POLL_LIMIT*4}
        {lp}:
        ds_read_b32 v{tmpv}, {addr_v}
        s_waitcnt lgkmcnt(0)
        v_cmp_gt_u32 vcc, {val}, v{tmpv}
        s_cbranch_vccz {dn}
        s_sub_u32 {sCNT}, {sCNT}, 1
        s_cbranch_scc0 {lp}
        {dn}:""")

    def allred_g(s, op, r, t):
        s(f"v_mov_b32 v{t}, v{r}\nv_permlane16_swap_b32 v{r}, v{t}\n{op} v{r}, v{r}, v{t}")
        s(f"v_mov_b32 v{t}, v{r}\nv_permlane32_swap_b32 v{r}, v{t}\n{op} v{r}, v{r}, v{t}")

    def allred_row(s, op, r, steps):
        for k in steps:
            s(f"{op}_dpp v{r}, v{r}, v{r} row_ror:{k} row_mask:0xf bank_mask:0xf")

    def exec_mask(s, m32):
        s(f"s_mov_b32 exec_lo, {m32:#x}\ns_mov_b32 exec_hi, {m32:#x}")

    def exec_all(s):
        s("s_mov_b64 exec, -1")

    def wo_voff(s, dst, lin, t0, t1):
        s(f"""v_mul_u32_u24 v{t0}, 14564, v{lin}
        v_lshrrev_b32 v{t0}, 20, v{t0}
        v_mul_u32_u24 v{t1}, 72, v{t0}
        v_sub_u32 v{t1}, v{lin}, v{t1}
        v_lshrrev_b32 v{dst}, 1, v{t0}
        v_and_b32 v{dst}, 2, v{dst}
        v_xor_b32 v{t1}, v{t1}, v{dst}
        v_lshrrev_b32 v{dst}, 2, v{t0}
        v_and_b32 v{dst}, 4, v{dst}
        v_xor_b32 v{t1}, v{t1}, v{dst}
        v_mul_u32_u24 v{t0}, 1152, v{t0}
        v_lshl_add_u32 v{dst}, v{t1}, 4, v{t0}""")

    def s5_addr(s, WOI, rows_buf, rows_per):
        s(f"""v_lshrrev_b32 v4, 2, {vJ}
        v_and_b32 v5, 1, v4
        v_lshrrev_b32 v6, 1, v4
        v_lshl_add_u32 v6, {vG}, 2, v6
        v_lshl_add_u32 v6, v5, 4, v6
        v_mul_u32_u24 v6, 1152, v6
        v_and_b32 v7, 1, {vG}
        v_lshl_or_b32 v7, v5, 1, v7
        v_lshlrev_b32 v7, 1, v7
        v_bfe_u32 v8, {vJ}, 1, 1
        v_xor_b32 v7, v7, v8
        s_and_b32 s4, s3, 3
        s_lshl_b32 s4, s4, 1
        v_xor_b32 v7, s4, v7
        v_lshl_add_u32 v6, v7, 4, v6
        v_and_b32 v8, 1, {vJ}
        v_lshl_add_u32 v6, v8, 3, v6
        v_add_u32 v240, {WOI + 1024}, v6
        s_lshr_b32 s4, s3, 2
        s_lshl_b32 s4, s4, 7
        s_add_u32 s4, s4, {WOI}
        v_add_u32 v239, s4, v6
        s_lshl_b32 s4, {sHL}, 2
        s_add_u32 s4, s4, {sQ}
        s_mul_i32 s4, s4, {rows_per * 64}
        s_add_u32 s4, s4, {rows_buf}
        v_lshlrev_b32 v241, 6, {vJ}
        v_lshl_add_u32 v241, {vG}, 4, v241
        v_add_u32 v241, s4, v241
        s_mul_i32 s4, {sROLE}, {36 * 8192}
        s_lshl_b32 s5, {sIDX}, 6
        s_add_u32 s4, s4, s5
        s_add_u32 s4, s4, {O5}
        s_lshl_b32 s5, s3, 13
        s_add_u32 s5, s5, s4
        v_lshlrev_b32 v242, 16, {vG}
        v_lshl_add_u32 v242, {vJ}, 2, v242
        v_add_u32 v242, s5, v242
        s_and_b32 s5, s3, 3
        s_add_u32 s5, s5, 32
        s_lshl_b32 s5, s5, 13
        s_add_u32 s5, s5, s4
        v_lshlrev_b32 v243, 2, {vJ}
        v_add_u32 v243, s5, v243""")

    def s5_trreads(s):
        for u in range(4):
            s(f"ds_read_b64_tr_b16 {vr(112+4*u,2)}, v239 offset:{256*u}")
            s(f"ds_read_b64_tr_b16 {vr(114+4*u,2)}, v239 offset:{256*u+2304}")
        s(f"ds_read_b64_tr_b16 {vr(128,2)}, v240\nds_read_b64_tr_b16 {vr(130,2)}, v240 offset:2304")

    def s5_out(s, y):
        s(f"""v_permlane32_swap_b32 v{y[0]}, v{y[2]}
        v_permlane32_swap_b32 v{y[1]}, v{y[3]}
        v_mov_b32 v4, v{y[4]}
        v_add_f32 v{y[0]}, v{y[0]}, v{y[2]}
        v_add_f32 v{y[1]}, v{y[1]}, v{y[3]}
        v_permlane32_swap_b32 v{y[4]}, v4
        v_add_f32 v{y[4]}, v{y[4]}, v4
        v_permlane16_swap_b32 v{y[0]}, v{y[1]}
        v_mov_b32 v4, v{y[4]}
        v_add_f32 v{y[0]}, v{y[0]}, v{y[1]}
        v_bfi_b32 v{y[0]}, {vFF}, {sT}, v{y[0]}
        buffer_store_dword v{y[0]}, v242, {WS}, 0 offen sc1
        v_permlane16_swap_b32 v{y[4]}, v4
        v_add_f32 v{y[4]}, v{y[4]}, v4
        v_bfi_b32 v{y[4]}, {vFF}, {sT}, v{y[4]}
        s_cmp_ge_u32 s3, 4
        s_cbranch_scc1 L_fin
        s_mov_b64 exec, 0xffff
        buffer_store_dword v{y[4]}, v243, {WS}, 0 offen sc1
        s_branch L_exit""")

    def weights(s, rowsteps):
        s("v_mov_b32 v53, v48")
        s.allred_row("v_max_f32", 53, rowsteps)
        s.allred_g("v_max_f32", 53, 54)
        s("v_sub_f32 v52, v48, v53\nv_exp_f32 v52, v52\nv_mul_f32 v53, v52, v49")
        s.allred_row("v_add_f32", 53, rowsteps)
        s.allred_g("v_add_f32", 53, 54)
        s("v_rcp_f32 v53, v53\nv_mul_f32 v52, v52, v53")

    def wsum(s, y, D):
        s(f"v_mul_f32_dpp v{y}, v52, v{D} row_newbcast:0 row_mask:0xf bank_mask:0xf")
        for r in range(1, 4):
            s(f"v_fmac_f32_dpp v{y}, v52, v{D+r} row_newbcast:{r} row_mask:0xf bank_mask:0xf")

    def a_addr(s):
        s(f"""v_xor_b32 v4, {vG}, {vJ}
        v_lshlrev_b32 v4, 4, v4
        s_lshl_b32 s4, s3, 14
        v_lshl_add_u32 v5, {vJ}, 10, s4
        v_add_u32 v200, v5, v4
        v_xor_b32 v201, 64, v200
        v_xor_b32 v202, 0x80, v200
        v_xor_b32 v203, 0xc0, v200
        v_lshrrev_b32 v5, 3, {vJ}
        v_lshlrev_b32 v5, 14, v5
        v_and_b32 v6, 7, {vJ}
        v_lshl_add_u32 v5, v6, 10, v5
        v_add_u32 v5, {X}, v5
        v_add_u32 v204, v5, v4
        v_xor_b32 v205, 64, v204
        v_xor_b32 v206, 0x80, v204
        v_xor_b32 v207, 0xc0, v204""")
        s(f"""v_lshrrev_b32 v4, 2, {vJ}
        v_lshlrev_b32 v4, 1, v4
        v_lshl_add_u32 v5, {vG}, 3, v4
        v_lshlrev_b32 v5, 10, v5
        v_xor_b32 v6, s3, {vG}
        v_and_b32 v6, 1, v6
        v_lshl_add_u32 v6, v6, 3, v4
        v_bfe_u32 v7, {vJ}, 1, 1
        v_add_u32 v6, v6, v7
        v_lshl_add_u32 v5, v6, 4, v5
        v_and_b32 v7, 1, {vJ}
        v_lshl_add_u32 v5, v7, 3, v5
        s_lshr_b32 s4, s3, 1
        s_lshl_b32 s4, s4, 8
        v_add_u32 v208, s4, v5""")
        for k in range(1, 8):
            s(f"v_xor_b32 v{208+k}, {k << 4}, v208")
        s(f"""v_mul_u32_u24 v4, {PS}, {vJ}
        v_lshl_add_u32 v219, {vG}, 4, v4
        v_add_u32 v219, {A_P}, v219
        v_lshrrev_b32 v5, 1, {vG}
        v_lshl_add_u32 v4, v5, 4, v4
        v_and_b32 v5, 1, {vG}
        v_lshl_add_u32 v4, v5, 2, v4
        s_lshl_b32 s4, s3, 5
        s_add_u32 s4, s4, {A_P}
        v_add_u32 v216, s4, v4
        v_lshlrev_b32 v4, 5, {vJ}
        v_add_u32 v218, {A_MX}, v4
        s_lshl_b32 s4, s3, 2
        v_add_u32 v217, s4, v218
        s_lshl_b32 s4, {sHH}, 20
        s_lshl_b32 s5, s3, 13
        s_add_u32 s4, s4, s5
        s_lshl_b32 s5, {sCH}, 7
        s_add_u32 s4, s4, s5
        s_add_u32 s4, s4, {P34}
        v_lshlrev_b32 v4, 16, {vJ}
        v_lshl_add_u32 v4, {vG}, 4, v4
        v_add_u32 v220, s4, v4
        s_lshl_b32 s4, {sHH}, 14
        s_lshl_b32 s5, {sCH}, 4
        s_add_u32 s4, s4, s5
        s_add_u32 s4, s4, {ST34}
        v_lshl_add_u32 v221, {vJ}, 10, s4""")
        s(f"""s_and_b32 s4, s3, 1
        s_lshl_b32 s4, s4, 3
        v_lshl_add_u32 v4, {vG}, 1, s4
        v_xor_b32 v4, v4, {vJ}
        v_lshlrev_b32 v4, 4, v4
        v_lshl_add_u32 v222, {vG}, 13, v4""")
        for u in range(5):
            s(f"s_lshl_b32 s4, s3, 6\ns_add_u32 s4, s4, {512*u}\nv_add_u32 v9, s4, {vL}")
            s.wo_voff(223 + u, 9, 4, 5)
        s(f"""v_lshrrev_b32 v4, 2, {vJ}
        v_lshl_add_u32 v5, {vG}, 2, v4
        v_and_b32 v6, 7, v5
        v_lshlrev_b32 v6, 1, v6
        v_bfe_u32 v7, {vJ}, 1, 1
        v_xor_b32 v6, v6, v7
        v_lshlrev_b32 v5, 8, v5
        v_lshl_add_u32 v5, v6, 4, v5
        v_and_b32 v7, 1, {vJ}
        v_lshl_add_u32 v5, v7, 3, v5
        s_and_b32 s4, s3, 1
        s_lshl_b32 s4, s4, 14
        s_add_u32 s4, s4, {A_WUV}
        v_add_u32 v228, s4, v5""")
        for k in range(1, 8):
            s(f"v_xor_b32 v{228+k}, {k << 5}, v228")
        s(f"""s_lshl_b32 s4, {sHL}, 16
        s_lshl_b32 s5, {sQ}, 14
        s_add_u32 s4, s4, s5
        s_and_b32 s5, s3, 1
        s_lshl_b32 s5, s5, 13
        s_add_u32 s4, s4, s5
        s_lshr_b32 s6, s3, 1
        s_lshl_b32 s5, s6, 11
        s_add_u32 s4, s4, s5
        s_add_u32 s4, s4, {P34}
        v_lshlrev_b32 v4, 7, {vJ}
        v_lshl_add_u32 v4, {vG}, 4, v4
        v_add_u32 v236, s4, v4
        v_lshrrev_b32 v4, 2, {vJ}
        v_add_u32 v4, s6, v4
        v_and_b32 v4, 3, v4
        v_lshlrev_b32 v4, 2, v4
        v_add_u32 v4, v4, {vG}
        v_and_b32 v5, 3, {vJ}
        v_lshl_add_u32 v4, v4, 2, v5
        s_lshl_b32 s4, {sHL}, 10
        s_add_u32 s4, s4, {ST34}
        v_lshl_add_u32 v237, v4, 4, s4
        s_lshl_b32 s4, {sHL}, 13
        s_lshl_b32 s5, {sQ}, 9
        s_add_u32 s4, s4, s5
        s_lshl_b32 s5, s3, 6
        s_add_u32 s4, s4, s5
        s_add_u32 s4, s4, {C45}
        v_lshlrev_b32 v4, 11, {vG}
        v_lshl_add_u32 v4, {vJ}, 2, v4
        v_add_u32 v238, s4, v4""")
        s.s5_addr(A_WO, C45, 32)

    def b_addr(s):
        s(f"""v_lshrrev_b32 v4, 2, {vJ}
        v_lshl_add_u32 v5, {vG}, 2, v4
        v_and_b32 v6, 7, v5
        v_lshlrev_b32 v6, 1, v6
        v_bfe_u32 v7, {vJ}, 1, 1
        v_xor_b32 v6, v6, v7
        s_and_b32 s4, s3, 3
        s_lshl_b32 s4, s4, 2
        v_xor_b32 v6, s4, v6
        v_lshlrev_b32 v5, 8, v5
        v_lshl_add_u32 v5, v6, 4, v5
        v_and_b32 v7, 1, {vJ}
        v_lshl_add_u32 v5, v7, 3, v5
        s_lshr_b32 s6, s3, 2
        s_lshl_b32 s4, s6, 15
        s_add_u32 s4, s4, {B_V}
        v_add_u32 v208, s4, v5
        v_xor_b32 v209, 32, v208
        v_and_b32 v4, 1, v4
        v_lshlrev_b32 v4, 8, v4
        v_lshl_add_u32 v4, {vG}, 4, v4
        s_lshl_b32 s4, s6, 9
        s_add_u32 s4, s4, {B_P}
        v_add_u32 v219, s4, v4
        s_lshl_b32 s4, {sCH}, 13
        s_and_b32 s5, s3, 3
        s_lshl_b32 s5, s5, 10
        s_add_u32 s4, s4, s5
        s_lshl_b32 s5, {sHH}, 1
        s_add_u32 s5, s5, s6
        s_lshl_b32 s5, s5, 6
        s_add_u32 s4, s4, s5
        s_add_u32 s4, s4, {OB}
        v_lshlrev_b32 v4, 12, {vG}
        v_lshl_add_u32 v4, {vJ}, 2, v4
        v_add_u32 v220, s4, v4
        v_and_b32 v4, 3, {vJ}
        v_lshl_add_u32 v4, {vG}, 2, v4
        s_lshl_b32 s4, {sHL}, 8
        s_add_u32 s4, s4, {STB}
        v_lshl_add_u32 v237, v4, 4, s4""")
        s.s5_addr(B_WO, OB, 16)

    def q_stage(s, a, b, addr, off):
        for k in range(4):
            s(f"v_add_f32 v{a+k}, v{a+k}, v{b+k}")
        s(f"""v_permlane32_swap_b32 v{a}, v{a+2}
        v_permlane32_swap_b32 v{a+1}, v{a+3}
        v_add_f32 v{a}, v{a}, v{a+2}
        v_add_f32 v{a+1}, v{a+1}, v{a+3}
        v_cvt_pk_bf16_f32 v{a}, v{a}, v{a+1}
        ds_write_b32 v{addr}, v{a} offset:{off}""")

    def build(s):
        o = s.o
        s(f"""s_cmp_ge_u32 s2, 256
        s_cbranch_scc1 L_exit0
        s_load_dwordx16 s[16:31], s[0:1], 0
        s_load_dwordx8 s[32:39], s[0:1], 64
        s_load_dwordx2 s[40:41], s[0:1], 104""")
        if o["stamps"]:
            s("s_memrealtime s[14:15]")
        s(f"""v_lshrrev_b32 v4, 6, v0
        v_and_b32 {vL}, 63, v0
        v_and_b32 {vJ}, 15, v0
        v_readfirstlane_b32 s3, v4
        v_lshrrev_b32 {vG}, 4, {vL}
        s_lshr_b32 {sROLE}, s2, 7
        s_and_b32 {sIDX}, s2, 127
        s_and_b32 s4, s2, 7
        s_lshr_b32 s5, {sIDX}, 3
        s_and_b32 {sQ}, s5, 3
        s_lshr_b32 s6, s5, 2
        s_lshl_b32 s6, s6, 3
        s_add_u32 s6, s6, s4
        s_lshr_b32 s7, s5, 1
        s_lshl_b32 s7, s7, 3
        s_add_u32 s7, s7, s4
        s_and_b32 s8, s5, 1
        s_lshr_b32 s9, s5, 3
        s_lshl_b32 s9, s9, 3
        s_add_u32 s9, s9, s4
        s_and_b32 s10, s5, 7
        s_lshr_b32 s11, s10, 2
        s_lshl_b32 s12, s9, 1
        s_add_u32 s11, s11, s12
        s_cmp_eq_u32 {sROLE}, 0
        s_cselect_b32 {sHL}, s6, s11
        s_cselect_b32 {sCH}, s7, s9
        s_cselect_b32 {sHH}, s8, s10
        s_lshl_b32 {sH}, {sROLE}, 5
        s_add_u32 {sH}, {sH}, {sHL}
        v_lshrrev_b32 v4, 3, {vL}
        v_mul_u32_u24 v22, 36, v4
        v_mul_u32_u24 v21, {18*8192}, v4
        v_and_b32 v4, 7, {vL}
        v_lshl_add_u32 v21, v4, 4, v21
        s_mul_i32 s12, {sQ}, 288
        s_mul_i32 s13, {sQ}, {144*8192}
        s_lshl_b32 s4, {sHL}, 8
        s_add_u32 s13, s13, s4
        s_sub_u32 s4, s3, 1
        s_lshl_b32 s4, s4, 7
        s_add_u32 s13, s13, s4
        v_mov_b32 {vFF}, 0xff
        v_mov_b32 {v11}, 0x10001
        s_mov_b32 {sK}, {KSCALE:#x}
        s_cmp_eq_u32 {sROLE}, 0
        s_waitcnt lgkmcnt(0)""")
        if o["stamps"]:
            s("s_mov_b32 s90, s14")
            for k in range(1, 12): s(f"s_mov_b32 s{90+k}, 0")
        s.srd_sel(SX, 16, 28, 1152)
        s.srd_sel(SWQ, 20, 34, 4718592)
        s.srd_sel(SWO, 26, 36, 4718592)
        s(f"s_cselect_b32 s60, s18, s30\ns_cselect_b32 s61, s19, s31\ns_mov_b32 s62, 33554432\ns_cmov_b32 s62, 8388608\ns_mov_b32 s63, 0x20000")
        s(f"s_cselect_b32 s64, s22, s32\ns_cselect_b32 s65, s23, s33\ns_mov_b32 s66, 33554432\ns_cmov_b32 s66, 4194304\ns_mov_b32 s67, 0x20000")
        s.srd(M3, 24, 4194304)
        s.srd(SOUT, 38, 2304)
        s.srd(WS, 40, (STAMP + (1 << 20)) if o["stamps"] else WS_BYTES)
        s(f"""s_cmp_eq_u32 s3, 0
        s_cbranch_scc1 L_loader
        s_cmp_gt_u32 s3, 2
        s_cbranch_scc1 L_idle""")
        s(f"""buffer_load_dwordx4 v[12:15], v22, {SX}, s12 offen
        buffer_load_dwordx4 v[16:19], v22, {SX}, s12 offen offset:16
        buffer_load_dword v20, v22, {SX}, s12 offen offset:32""")
        for u in range(18):
            s(f"buffer_load_dwordx4 {vr(40+4*u,4)}, v21, {SWQ}, s13 offen nt")
            if u < 17: s("s_add_u32 s13, s13, 8192")
        def s1(role):
            s(f"s_mov_b32 {sPLO}, 0x05040100\ns_mov_b32 {sPHI}, 0x07060302")
            for e in range(8): s(f"v_mov_b32 v{24+e}, 0")
            if True:
                extra = 16 if role == 0 else 0
                for i in range(9):
                    s(f"s_waitcnt vmcnt({16 - 2*i + extra})")
                    a, b = 40 + 8 * i, 44 + 8 * i
                    for k in range(4):
                        s(f"v_perm_b32 v{32+2*k}, v{b+k}, v{a+k}, {sPLO}\nv_perm_b32 v{33+2*k}, v{b+k}, v{a+k}, {sPHI}")
                    for e in range(8):
                        s(f"v_dot2c_f32_bf16 v{24+e}, v{32+e}, v{12+i}")
            s("s_nop 2")
            for e in range(4): s(f"v_permlane32_swap_b32 v{24+e}, v{28+e}")
            for e in range(4): s(f"v_add_f32 v{24+e}, v{24+e}, v{28+e}")
            for e in range(2): s(f"v_permlane16_swap_b32 v{24+e}, v{26+e}")
            for e in range(2): s(f"v_add_f32 v{24+e}, v{24+e}, v{26+e}")
            s(f"""v_and_b32 v4, 7, {vL}
            v_lshlrev_b32 v4, 5, v4
            v_lshl_add_u32 v4, {vG}, 3, v4
            s_lshl_b32 s4, {sH}, 2
            s_add_u32 s4, s4, {sQ}
            s_lshl_b32 s4, s4, 9
            s_sub_u32 s5, s3, 1
            s_lshl_b32 s5, s5, 8
            s_add_u32 s4, s4, s5
            s_add_u32 s4, s4, {Q12}
            s_waitcnt lgkmcnt(0)""")
            s.epoch_fin()
            for e in range(2): s(f"v_add_f32_dpp v{24+e}, v{24+e}, v{24+e} row_ror:8 row_mask:0xf bank_mask:0xf")
            for e in range(2): s(f"v_bfi_b32 v{24+e}, {vFF}, {sT}, v{24+e}")
            s.exec_mask(0x00ff00ff)
            s(f"buffer_store_dwordx2 v[24:25], v4, {WS}, s4 offen sc1")
            s.exec_all()
            s.stamp(1)
            s(f"""v_and_b32 v4, 31, {vL}
            v_lshrrev_b32 v5, 5, {vL}
            v_lshlrev_b32 v6, 4, v4
            v_lshl_add_u32 v22, v5, 9, v6
            v_lshlrev_b32 v5, 2, v5
            v_lshl_add_u32 v21, v4, 3, v5""")
        s(f"s_cmp_eq_u32 {sROLE}, 0\ns_cbranch_scc0 L_wB")
        for q in range(4):
            s(f"""v_add_u32 v4, {4*q}, {vG}
            v_xor_b32 v4, v4, {vJ}
            v_lshlrev_b32 v4, 4, v4
            v_lshl_add_u32 v{112+q}, {vG}, 13, v4""")
        s(f"""s_sub_u32 s4, s3, 1
        s_lshl_b32 s8, s4, 14
        s_add_u32 s8, s8, {X}
        s_lshl_b32 s5, {sQ}, 20
        s_lshl_b32 s4, s4, 19
        s_add_u32 s5, s5, s4
        s_lshl_b32 s4, {sHL}, 8
        s_add_u32 s5, s5, s4
        s_mov_b32 m0, s8""")
        for n in range(16):
            s(f"buffer_load_dwordx4 v{112+(n&3)}, {M2}, s5 offen nt lds")
            if n < 15: s("s_add_u32 m0, m0, 1024\ns_add_u32 s5, s5, 32768")
        s("s_barrier")
        s.epoch()
        s.a_addr()
        s1(0)
        s(f"""v_xor_b32 v4, {vG}, {vJ}
        v_lshlrev_b32 v4, 4, v4
        v_lshl_add_u32 v4, {vJ}, 8, v4
        v_add_u32 v180, s8, v4
        v_xor_b32 v181, 64, v180
        v_xor_b32 v182, 0x80, v180
        v_xor_b32 v183, 0xc0, v180
        s_add_u32 s9, s8, 8192
        v_add_u32 v21, s9, v21
        v_lshl_add_u32 v23, {vG}, 4, s9
        s_lshl_b32 s4, {sH}, 11
        s_add_u32 s4, s4, {Q12}
        s_waitcnt vmcnt(1)""")
        for t in range(4):
            for k in range(4):
                s(f"ds_read_b128 {vr(116+16*t+4*k,4)}, v{180+k} offset:{4096*t}")
        def ld():
            s(f"buffer_load_dwordx4 v[40:43], v22, {WS}, s4 offen sc1\nbuffer_load_dwordx4 v[44:47], v22, {WS}, s4 offen offset:1024 sc1")
        def ck():
            t = s.tagcheck(list(range(40, 48)), sT, [32, 33, 34, 35]); s(f"v_and_b32 v{t}, {vFF}, v{t}"); return t
        s.poll(ld, ck)
        s.stamp(2)
        s("s_waitcnt lgkmcnt(0)")
        s.q_stage(40, 44, 21, 0)
        s("s_waitcnt lgkmcnt(0)")
        for k in range(4): s(f"ds_read_b128 {vr(56+4*k,4)}, v23 offset:{64*k}")
        s(f"""v_lshlrev_b32 v5, 5, {vJ}
        v_lshl_add_u32 v5, {vG}, 3, v5
        s_lshl_b32 s4, {sHL}, 10
        s_lshl_b32 s5, {sQ}, 8
        s_add_u32 s4, s4, s5
        s_sub_u32 s5, s3, 1
        s_lshl_b32 s5, s5, 7
        s_add_u32 s4, s4, s5
        s_add_u32 s4, s4, {QABS}
        v_and_b32 v6, 3, {vJ}""")
        for k in range(4):
            s(f"s_waitcnt lgkmcnt({3-k})")
            for t in range(4):
                s(f"v_mfma_f32_16x16x32_bf16 {vr(72+4*t,4)}, {vr(116+16*t+4*k,4)}, {vr(56+4*k,4)}, {vr(72+4*t,4) if k else 0}")
        s("v_cmp_eq_u32 vcc, 1, v6\nv_cmp_eq_u32 s[6:7], 2, v6\nv_cmp_eq_u32 s[10:11], 3, v6")
        for t in range(4):
            s(f"v_cvt_pk_bf16_f32 v{72+4*t}, v{72+4*t}, v{73+4*t}\nv_cvt_pk_bf16_f32 v{73+4*t}, v{74+4*t}, v{75+4*t}")
        for d in range(2):
            s(f"""v_cndmask_b32 v{72+d}, v{72+d}, v{76+d}, vcc
            v_cndmask_b32 v{72+d}, v{72+d}, v{80+d}, s[6:7]
            v_cndmask_b32 v{72+d}, v{72+d}, v{84+d}, s[10:11]
            v_bfi_b32 v{72+d}, {v11}, {sT2}, v{72+d}""")
        s.exec_mask(0x000f000f)
        s(f"buffer_store_dwordx2 v[72:73], v5, {WS}, s4 offen sc1")
        s.exec_all()
        s.stamp(3)
        s(f"""s_lshl_b32 s4, {sHH}, 14
        s_sub_u32 s5, s3, 1
        s_lshl_b32 s6, s5, 13
        s_add_u32 s4, s4, s6
        s_add_u32 s4, s4, {QABS}
        s_add_u32 s6, s4, 4096
        v_lshlrev_b32 v22, 4, {vL}
        s_lshl_b32 s5, s5, 7
        v_xor_b32 v21, s5, v22
        v_add_u32 v21, s8, v21""")
        def ld():
            for u in range(8):
                s(f"buffer_load_dwordx4 {vr(40+4*u,4)}, v22, {WS}, {'s4' if u < 4 else 's6'} offen offset:{1024*(u&3)} sc1")
        def ck():
            t = s.tagcheck(list(range(40, 72)), sT2, list(range(72, 88))); s(f"v_and_b32 v{t}, {v11}, v{t}"); return t
        s.poll(ld, ck)
        s.stamp(4)
        for u in range(8):
            s(f"v_xor_b32 v{88+u}, {16*u}, v21\nds_write_b128 v{88+u}, {vr(40+4*u,4)} offset:{1024*u}")
        s("s_waitcnt lgkmcnt(0)\ns_branch L_A3")
        s("L_wB:\ns_barrier")
        s.epoch()
        s.b_addr()
        s1(1)
        s(f"""s_sub_u32 s8, s3, 1
        s_lshl_b32 s9, s8, 9
        s_add_u32 s9, s9, {B_Q}
        v_add_u32 v21, s9, v21
        v_and_b32 v4, 1, {vJ}
        v_lshlrev_b32 v4, 8, v4
        v_lshl_add_u32 v4, {vG}, 4, v4
        v_add_u32 v23, s9, v4
        s_lshl_b32 s4, {sCH}, 12
        s_add_u32 s4, s4, {Q12 + 32*2048}
        v_xor_b32 v4, {vG}, {vJ}
        v_lshlrev_b32 v4, 4, v4
        v_lshl_add_u32 v4, {vJ}, 8, v4
        s_lshl_b32 s5, s8, 15
        v_add_u32 v180, s5, v4
        v_xor_b32 v181, 64, v180
        v_xor_b32 v182, 0x80, v180
        v_xor_b32 v183, 0xc0, v180
        v_mov_b32 v184, {B_FL}""")
        def ld():
            for u in range(4): s(f"buffer_load_dwordx4 {vr(40+4*u,4)}, v22, {WS}, s4 offen offset:{1024*u} sc1")
        def ck():
            t = s.tagcheck(list(range(40, 56)), sT, list(range(72, 80))); s(f"v_and_b32 v{t}, {vFF}, v{t}"); return t
        s.poll(ld, ck)
        s.stamp(2)
        s.q_stage(40, 44, 21, 0)
        s.q_stage(48, 52, 21, 256)
        s("s_waitcnt lgkmcnt(0)")
        for k in range(4): s(f"ds_read_b128 {vr(56+4*k,4)}, v23 offset:{64*k}")
        s("s_add_u32 s5, s8, 1")
        s.ldsflag_wait("v184", "s5", 4)
        s.stamp(3)
        seq = [(t, k) for t in range(8) for k in range(4)]
        def rd(i): t, k = seq[i]; s(f"ds_read_b128 {vr(72+4*(i%8),4)}, v{180+k} offset:{4096*t}")
        for i in range(8): rd(i)
        for i, (t, k) in enumerate(seq):
            s(f"s_waitcnt lgkmcnt({min(7, 31-i)})")
            s(f"v_mfma_f32_16x16x32_bf16 {vr(112+4*t,4)}, {vr(72+4*(i%8),4)}, {vr(56+4*k,4)}, {vr(112+4*t,4) if k else 0}")
            if i + 8 < 32: rd(i + 8)
        s("v_mov_b32 v4, 1\nds_add_u32 v184, v4 offset:4")
        s("v_max3_f32 v40, v112, v113, v114")
        for r in range(115, 143, 2): s(f"v_max3_f32 v40, v40, v{r}, v{r+1}")
        s("v_max_f32 v40, v40, v143")
        s.allred_g("v_max_f32", 40, 4)
        s(f"v_mul_f32 v40, {sK}, v40")
        for r in range(112, 144): s(f"v_fma_f32 v{r}, v{r}, {sK}, -v40")
        for r in range(112, 144): s(f"v_exp_f32 v{r}, v{r}")
        s("v_add_f32 v41, v112, v113\nv_add_f32 v42, v114, v115")
        for r in range(116, 144, 2): s(f"v_add_f32 v41, v41, v{r}\nv_add_f32 v42, v42, v{r+1}")
        s("v_add_f32 v41, v41, v42")
        for r in range(16): s(f"v_cvt_pk_bf16_f32 v{72+r}, v{112+2*r}, v{113+2*r}")
        s.allred_g("v_add_f32", 41, 4)
        s(f"""v_lshlrev_b32 v4, 8, {vJ}
        v_lshl_add_u32 v4, {vG}, 4, v4
        s_lshl_b32 s4, s8, 9
        s_add_u32 s4, s4, {B_P}
        v_add_u32 v4, s4, v4
        v_mov_b32 v42, {sT}
        v_mov_b32 v43, {sT}
        s_lshl_b32 s4, {sCH}, 9
        s_lshl_b32 s5, {sHH}, 1
        s_add_u32 s5, s5, s8
        s_lshl_b32 s5, s5, 4
        s_add_u32 s4, s4, s5
        s_add_u32 s4, s4, {STB}
        v_lshlrev_b32 v5, 8, {vJ}""")
        s.exec_mask(0x00030003)
        for k in range(4): s(f"ds_write_b128 v4, {vr(72+4*k,4)} offset:{64*k}")
        s(f"s_mov_b64 exec, 3\nbuffer_store_dwordx4 v[40:43], v5, {WS}, s4 offen sc1")
        s.exec_all()
        s.stamp(4)
        s("s_waitcnt lgkmcnt(0)\ns_branch L_B3")
        s(f"""L_idle:
        v_mov_b32 v4, {B_FL}
        v_mov_b32 v6, 0
        v_mov_b32 v7, 0
        s_cmp_eq_u32 {sROLE}, 0
        s_cbranch_scc1 L_idleA
        ds_write_b64 v4, v[6:7]
        s_waitcnt lgkmcnt(0)
        s_barrier""")
        s.epoch()
        if o["pretouch"]:
            s(f"""s_cmp_lt_u32 s3, 4
            s_cbranch_scc1 L_nopt
            s_lshl_b32 s4, {sIDX}, 14
            s_and_b32 s5, s3, 3
            s_lshl_b32 s5, s5, 12
            s_add_u32 s4, s4, s5
            s_add_u32 s4, s4, {P34}
            v_lshlrev_b32 v4, 4, {vL}""")
            for u in range(4): s(f"buffer_load_dwordx4 {vr(40+4*u,4)}, v4, {WS}, s4 offen offset:{1024*u} sc1")
            s("L_nopt:")
        s.b_addr()
        s("s_waitcnt lgkmcnt(0)")
        s.epoch_fin()
        s("s_waitcnt vmcnt(0)\ns_branch L_B3")
        s("L_idleA:\ns_barrier")
        s.epoch()
        s.a_addr()
        s("s_waitcnt lgkmcnt(0)")
        s.epoch_fin()
        s("s_branch L_A3")
        s(f"""L_loader:
        s_cmp_eq_u32 {sROLE}, 0
        s_cbranch_scc0 L_loaderB
        v_lshlrev_b32 v40, 4, {vL}""")
        for k in range(1, 16): s(f"v_xor_b32 v{40+k}, {16*k}, v40")
        s(f"""s_lshl_b32 s8, {sCH}, 17
        s_lshl_b32 s9, {sHH}, 16
        s_mov_b32 s10, 8
        s_barrier""")
        s.epoch()
        s("L_ldA:")
        for q in range(4):
            s(f"s_mov_b32 m0, s9\ns_add_u32 s5, s8, s9\ns_add_u32 s9, s9, 4096")
            for k in range(4):
                s(f"buffer_load_dwordx4 v{40+4*q+k}, {M1}, s5 offen offset:{1024*k} nt lds\ns_waitcnt vmcnt({o['WA']})")
        s(f"""s_and_b32 s9, s9, 0x1ffff
        s_sub_u32 s10, s10, 1
        s_cmp_lg_u32 s10, 0
        s_cbranch_scc1 L_ldA""")
        s.a_addr()
        s("s_waitcnt lgkmcnt(0)")
        s.epoch_fin()
        s("s_waitcnt vmcnt(0)")
        s.stamp(1)
        s("s_branch L_A3")
        s("L_loaderB:")
        for q in range(4):
            s(f"""v_add_u32 v4, {4*q}, {vG}
            v_xor_b32 v4, v4, {vJ}
            v_lshlrev_b32 v4, 4, v4
            v_lshl_add_u32 v{40+q}, {vG}, 8, v4""")
        for q in range(2):
            s(f"""v_lshl_add_u32 v4, {vG}, 1, {8*q}
            v_xor_b32 v4, v4, {vJ}
            v_lshlrev_b32 v4, 4, v4
            v_lshl_add_u32 v{44+q}, {vG}, 8, v4""")
        s(f"""s_lshl_b32 s8, {sCH}, 21
        s_lshl_b32 s4, {sHH}, 16
        s_add_u32 s8, s8, s4
        s_add_u32 s8, s8, {6144*256}
        s_mov_b32 s9, 0
        v_mov_b32 v46, {B_FL}
        v_mov_b32 v47, 1
        v_mov_b32 v48, 2
        s_barrier""")
        s.epoch()
        W1, W2 = o["WB1"], o["WB2"]
        def grp(srd, voffs, W, ldsbase):
            s(f"s_add_u32 m0, s9, {ldsbase}\ns_add_u32 s5, s8, s9\ns_add_u32 s9, s9, 4096")
            for k in range(4):
                s(f"buffer_load_dwordx4 v{voffs[k]}, {srd}, s5 offen offset:{1024*k} nt lds\ns_waitcnt vmcnt({W})")
        g1 = 8 + (W1 + 3) // 4
        assert g1 <= 16
        s("L_ldK1:"); grp(M1, [40, 41, 42, 43], W1, B_K)
        s(f"s_cmp_lt_u32 s9, {g1*4096}\ns_cbranch_scc1 L_ldK1")
        s("ds_write_b32 v46, v47")
        if g1 < 16:
            s("L_ldK2:"); grp(M1, [40, 41, 42, 43], W1, B_K)
            s(f"s_cmp_lt_u32 s9, {16*4096}\ns_cbranch_scc1 L_ldK2")
        s("s_mov_b32 s9, 0")
        g2 = (W1 + 3) // 4
        s("L_ldV1:"); grp(M2, [44, 45, 44, 45], W1, B_V)
        s(f"s_cmp_lt_u32 s9, {g2*4096}\ns_cbranch_scc1 L_ldV1")
        s("ds_write_b32 v46, v48")
        s.stamp(1)
        s("L_ldV2:"); grp(M2, [44, 45, 44, 45], W2, B_V)
        s(f"s_cmp_lt_u32 s9, {16*4096}\ns_cbranch_scc1 L_ldV2")
        for n in range(9):
            s(f"v_add_u32 v9, {64*n}, {vL}")
            s.wo_voff(50 + n, 9, 4, 5)
        s.b_addr()
        s("v_add_u32 v46, 4, v46\ns_waitcnt lgkmcnt(0)")
        s.epoch_fin()
        s.ldsflag_wait("v46", "0x80", 4)
        s(f"""s_mul_i32 s8, {sHL}, 147456
        s_mul_i32 s4, {sQ}, 36864
        s_add_u32 s8, s8, s4
        s_mov_b32 m0, {B_WO}""")
        npre = min(36, W2)
        for n in range(36):
            if n == npre:
                s(f"s_waitcnt vmcnt({npre})")
                s.stamp(2)
                s("s_barrier")
            if n == 18:
                for k in range(9): s(f"v_xor_b32 v{50+k}, 64, v{50+k}")
            s(f"buffer_load_dwordx4 v{50+n%9}, {SWO}, s8 offen nt lds")
            if n < npre: s(f"s_waitcnt vmcnt({W2})")
            s("s_add_u32 m0, m0, 1024")
            if n % 9 == 8: s("s_add_u32 s8, s8, 9216")
        if npre == 36:
            s("s_waitcnt vmcnt(36)"); s.stamp(2); s("s_barrier")
        s("s_branch L_B3b")
        s("L_A3:\ns_barrier")
        s.stamp(5)
        def rdq(i):
            s(f"ds_read_b128 {vr(40+4*(i%7),4)}, v{200+(i&3)} offset:{256*(i>>2)}\nds_read_b128 {vr(72+4*(i%7),4)}, v{204+(i&3)} offset:{256*(i>>2)}")
        for i in range(7): rdq(i)
        pv = [(ks, t, e) for ks in range(4) for t in range(4) for e in range(2)]
        def rdpv(n):
            ks, t, e = pv[n]
            if n == 16:
                for k in range(8): s(f"v_add_u32 v{208+k}, 0x10000, v{208+k}")
            s(f"ds_read_b64_tr_b16 {vr(112+16*ks+4*t+2*e,2)}, v{208+2*t+e} offset:{32768*(ks&1)+1024*e}")
        for i in range(16):
            s("s_waitcnt lgkmcnt(12)")
            s(f"v_mfma_f32_16x16x32_bf16 v[104:107], {vr(40+4*(i%7),4)}, {vr(72+4*(i%7),4)}, {'v[104:107]' if i else 0}")
            if i + 7 < 16: rdq(i + 7)
            else:
                rdpv(2 * (i - 9)); rdpv(2 * (i - 9) + 1)
        for n in range(14, 32): rdpv(n)
        s("v_max3_f32 v108, v104, v105, v106\nv_max_f32 v108, v108, v107")
        s.allred_g("v_max_f32", 108, 4)
        s("ds_write_b32 v217, v108\ns_waitcnt lgkmcnt(0)\ns_barrier")
        s("ds_read_b128 v[40:43], v218\nds_read_b128 v[44:47], v218 offset:16\ns_waitcnt lgkmcnt(0)")
        s(f"""v_max3_f32 v40, v40, v41, v42
        v_max3_f32 v44, v44, v45, v46
        v_max3_f32 v40, v40, v43, v47
        v_max_f32 v40, v40, v44
        v_mul_f32 v100, {sK}, v40""")
        for r in range(4): s(f"v_fma_f32 v{104+r}, v{104+r}, {sK}, -v100")
        for r in range(4): s(f"v_exp_f32 v{104+r}, v{104+r}")
        s("""v_add_f32 v108, v104, v105
        v_cvt_pk_bf16_f32 v40, v104, v106
        v_cvt_pk_bf16_f32 v41, v105, v107
        ds_write2_b32 v216, v40, v41 offset1:2
        v_add_f32 v108, v108, v106
        v_add_f32 v108, v108, v107""")
        s.allred_g("v_add_f32", 108, 4)
        s(f"ds_write_b32 v217, v108 offset:{A_LX - A_MX}\ns_waitcnt lgkmcnt(0)\ns_barrier")
        s.stamp(6)
        for k in range(4): s(f"ds_read_b128 {vr(40+4*k,4)}, v219 offset:{64*k}")
        s(f"ds_read_b128 v[88:91], v218 offset:{A_LX - A_MX}\nds_read_b128 v[92:95], v218 offset:{A_LX - A_MX + 16}")
        s(f"""s_lshl_b32 s5, {sQ}, 20
        s_lshl_b32 s4, {sHL}, 8
        s_add_u32 s5, s5, s4
        s_lshl_b32 s4, s3, 15
        s_add_u32 s5, s5, s4
        s_lshl_b32 s4, s3, 10
        s_add_u32 m0, s4, {A_WUV}""")
        for u in range(4):
            s(f"buffer_load_dwordx4 v222, {M3}, s5 offen nt lds")
            if u < 3: s(f"s_add_u32 m0, m0, 8192\ns_add_u32 s5, s5, {8*32768}")
        for ks in range(4):
            s(f"s_waitcnt lgkmcnt({5-ks})")
            for t in range(4):
                s(f"v_mfma_f32_16x16x32_bf16 {vr(56+4*t,4)}, {vr(112+16*ks+4*t,4)}, {vr(40+4*ks,4)}, {vr(56+4*t,4) if ks else 0}")
        s(f"""s_waitcnt lgkmcnt(0)
        v_add_f32 v88, v88, v89
        v_add_f32 v90, v90, v91
        v_add_f32 v92, v92, v93
        v_add_f32 v94, v94, v95
        v_add_f32 v88, v88, v90
        v_add_f32 v92, v92, v94
        v_add_f32 v101, v88, v92
        v_mov_b32 v102, {sT}
        v_mov_b32 v103, {sT}
        s_cmp_eq_u32 s3, 7
        s_cselect_b64 exec, 0xffff, 0
        buffer_store_dwordx4 v[100:103], v221, {WS}, 0 offen sc1""")
        s.exec_all()
        for u in range(2):
            for t in range(2):
                d = 56 + 8 * u + 4 * t
                s(f"v_cvt_pk_bf16_f32 v{72+4*u+2*t}, v{d}, v{d+1}\nv_cvt_pk_bf16_f32 v{73+4*u+2*t}, v{d+2}, v{d+3}")
            for k in range(4): s(f"v_bfi_b32 v{72+4*u+k}, {v11}, {sT2}, v{72+4*u+k}")
            s(f"buffer_store_dwordx4 {vr(72+4*u,4)}, v220, {WS}, 0 offen offset:{64*u} sc1")
        s.stamp(7)
        def wo_dma():
            s(f"""s_mul_i32 s8, {sHL}, 147456
            s_mul_i32 s4, {sQ}, 36864
            s_add_u32 s8, s8, s4
            s_lshl_b32 s4, s3, 10
            s_add_u32 m0, s4, {A_WO}""")
            for u in range(4):
                s(f"buffer_load_dwordx4 v{223+u}, {SWO}, s8 offen nt lds\ns_add_u32 m0, m0, 8192")
            lb = s.lab("Lwo")
            s(f"s_cmp_ge_u32 s3, 4\ns_cbranch_scc1 {lb}\nbuffer_load_dwordx4 v227, {SWO}, s8 offen nt lds\n{lb}:")
        if not o["wo_late"]:
            s("s_waitcnt vmcnt(2)")
            wo_dma()
        else:
            s("s_waitcnt vmcnt(2)")
        s("s_barrier")
        for u in range(2):
            for dt in range(8):
                for t in range(2):
                    s(f"ds_read_b64_tr_b16 {vr(112+32*u+4*dt+2*t,2)}, v{228+dt} offset:{8192*u+4096*t}")
        def ld():
            s(f"""buffer_load_dwordx4 v[48:51], v237, {WS}, 0 offen sc1
            buffer_load_dwordx4 v[40:43], v236, {WS}, 0 offen sc1
            buffer_load_dwordx4 v[44:47], v236, {WS}, 0 offen offset:64 sc1""")
        def ck():
            t = s.tagcheck(list(range(40, 48)), sT2, [32, 33, 34, 35])
            s(f"v_bitop3_b32 v36, v50, v51, {sT} bitop3:0x7e\nv_and_or_b32 v{t}, v{t}, {v11}, v36"); return t
        s.poll(ld, ck)
        s.stamp(8)
        if o["wo_late"]: wo_dma()
        s("s_waitcnt lgkmcnt(0)")
        for u in range(2):
            for dt in range(8):
                s(f"v_mfma_f32_16x16x32_bf16 {vr(56+4*dt,4)}, {vr(40+4*u,4)}, {vr(112+32*u+4*dt,4)}, {vr(56+4*dt,4) if u else 0}")
        s.weights([8, 4, 2, 1])
        for dt in range(8): s.wsum(88 + dt, 56 + 4 * dt)
        for t in range(4): s(f"v_permlane32_swap_b32 v{88+t}, v{92+t}")
        for t in range(4): s(f"v_add_f32 v{88+t}, v{88+t}, v{92+t}")
        for t in range(2): s(f"v_permlane16_swap_b32 v{88+t}, v{90+t}")
        for t in range(2): s(f"v_add_f32 v{88+t}, v{88+t}, v{90+t}")
        s(f"""v_cvt_pk_bf16_f32 v88, v88, v89
        v_bfi_b32 v88, {v11}, {sT2}, v88
        buffer_store_dword v88, v238, {WS}, 0 offen sc1""")
        s.stamp(9)
        if o["wo_late"]: s("s_waitcnt vmcnt(1)")
        s("s_barrier")
        s.s5_trreads()
        def ld():
            s(f"buffer_load_dwordx4 v[40:43], v241, {WS}, 0 offen sc1\nbuffer_load_dwordx4 v[44:47], v241, {WS}, 0 offen offset:1024 sc1")
        def ck():
            t = s.tagcheck(list(range(40, 48)), sT2, [32, 33, 34, 35]); s(f"v_and_b32 v{t}, {v11}, v{t}"); return t
        s.poll(ld, ck)
        s.stamp(10)
        s("s_waitcnt lgkmcnt(0)")
        for m in range(2):
            for u in range(5):
                s(f"v_mfma_f32_16x16x32_bf16 {vr(56+4*u,4)}, {vr(40+4*m,4)}, {vr(112+4*u,4)}, {vr(56+4*u,4) if m else 0}")
        for u in range(5):
            d = 56 + 4 * u
            s(f"v_add_f32 v{d}, v{d}, v{d+1}\nv_add_f32 v{d+2}, v{d+2}, v{d+3}")
        for u in range(5):
            d = 56 + 4 * u
            s(f"v_add_f32 v{88+u}, v{d}, v{d+2}")
        s.s5_out([88, 89, 90, 91, 92])
        s("L_B3:\ns_barrier\nL_B3b:")
        s.stamp(5)
        for ks in range(4):
            s(f"ds_read_b128 {vr(40+4*ks,4)}, v219 offset:{64*ks}")
            for tt in range(2):
                for t in range(2):
                    s(f"ds_read_b64_tr_b16 {vr(112+8*ks+4*tt+2*t,2)}, v{208+tt} offset:{8192*ks+4096*t}")
        for ks in range(4):
            s(f"s_waitcnt lgkmcnt({min(15, 5*(3-ks))})")
            for tt in range(2):
                s(f"v_mfma_f32_16x16x32_bf16 {vr(56+4*tt,4)}, {vr(40+4*ks,4)}, {vr(112+8*ks+4*tt,4)}, {vr(56+4*tt,4) if ks else 0}")
        s(f"""v_cvt_pk_bf16_f32 v88, v56, v60
        v_bfi_b32 v88, {v11}, {sT2}, v88
        s_mov_b32 exec_hi, 0
        buffer_store_dword v88, v220, {WS}, 0 offen sc1""")
        s.exec_all()
        s.stamp(7)
        s("s_waitcnt vmcnt(1)\ns_barrier")
        s.stamp(9)
        s.s5_trreads()
        def ld():
            s(f"buffer_load_dwordx4 v[48:51], v237, {WS}, 0 offen sc1\nbuffer_load_dwordx4 v[40:43], v241, {WS}, 0 offen sc1")
        def ck():
            t = s.tagcheck(list(range(40, 44)), sT2, [32, 33])
            s(f"v_bitop3_b32 v36, v50, v51, {sT} bitop3:0x7e\nv_and_or_b32 v{t}, v{t}, {v11}, v36"); return t
        s.poll(ld, ck)
        s.stamp(10)
        s("s_waitcnt lgkmcnt(0)")
        for u in range(5):
            s(f"v_mfma_f32_16x16x32_bf16 {vr(56+4*u,4)}, v[40:43], {vr(112+4*u,4)}, 0")
        s.weights([2, 1])
        for u in range(5): s.wsum(88 + u, 56 + 4 * u)
        s.s5_out([88, 89, 90, 91, 92])
        s(f"""L_fin:
        s_cmp_eq_u32 s3, 4
        s_cbranch_scc0 L_exit
        s_cmp_lt_u32 {sIDX}, 36
        s_cbranch_scc0 L_exit
        s_mul_i32 s4, {sROLE}, 36
        s_add_u32 s4, s4, {sIDX}
        s_lshl_b32 s8, s4, 5
        s_lshl_b32 s4, s4, 13
        s_add_u32 s4, s4, {O5}
        s_add_u32 s6, s4, 4096
        v_lshlrev_b32 v22, 4, {vL}
        v_lshlrev_b32 v21, 3, {vJ}
        v_lshl_add_u32 v21, {vG}, 1, v21""")
        def ld():
            for u in range(8):
                s(f"buffer_load_dwordx4 {vr(40+4*u,4)}, v22, {WS}, {'s4' if u < 4 else 's6'} offen offset:{1024*(u&3)} sc1")
        def ck():
            t = s.tagcheck(list(range(40, 72)), sT, list(range(72, 88))); s(f"v_and_b32 v{t}, {vFF}, v{t}"); return t
        s.poll(ld, ck)
        for st in (16, 8, 4):
            for k in range(st): s(f"v_add_f32 v{40+k}, v{40+k}, v{40+st+k}")
        s("""v_permlane32_swap_b32 v40, v42
        v_permlane32_swap_b32 v41, v43
        v_add_f32 v40, v40, v42
        v_add_f32 v41, v41, v43
        v_permlane16_swap_b32 v40, v41
        v_add_f32 v40, v40, v41""")
        s.allred_row("v_add_f32", 40, [8, 4])
        s("v_cvt_pk_bf16_f32 v40, v40, v40")
        s.exec_mask(0x000f000f)
        s(f"buffer_store_short v40, v21, {SOUT}, s8 offen")
        s(f"""s_cmp_eq_u32 {sIDX}, 0
        s_cbranch_scc0 L_exit
        s_mov_b64 exec, 1
        v_mov_b32 v41, {sT}
        v_mov_b32 v42, 0
        s_lshl_b32 s4, {sROLE}, 8
        buffer_store_dword v41, v42, {WS}, s4 offen sc1""")
        s("L_exit:")
        if o["stamps"]:
            s.stamp(11)
            s("s_mov_b64 exec, 1\ns_lshl_b32 s4, s2, 3\ns_add_u32 s4, s4, s3\ns_lshl_b32 s4, s4, 6\ns_add_u32 s4, s4, %d\nv_mov_b32 v4, 0" % STAMP)
            for q in range(3):
                for k in range(4): s(f"v_mov_b32 v{12+4*q+k}, s{90+4*q+k}")
                s(f"buffer_store_dwordx4 {vr(12+4*q,4)}, v4, {WS}, s4 offen offset:{16*q}")
        s("L_exit0:\ns_endpgm")
        lines, n = hazard.pad(s.L)
        pr = hazard.check_branches(lines)
        assert not pr, pr
        return wrap("\n".join(lines) + "\n", 256, 512, LDS, vgpr=256, sgpr=102)


def gen(**o):
    return G(**o).build()


if __name__ == "__main__":
    opts = {}
    for a in sys.argv[2:]:
        k, v = a.split("=")
        opts[k] = int(v)
    open(sys.argv[1], "w").write(gen(**opts))
```

```python
import sys, math
from asmgen import Asm, wrap, KN
import hazard

EPOCH = 0
Q12 = 0x10000
QABS = 0x40000
ST34 = 0x50000
STB = 0x60000
P34 = 0x100000
C45 = 0x400000
OB = 0x480000
O5 = 0x500000
WS_BYTES = 0x600000
STAMP = 128 << 20
X = 131072
A_MX, A_LX, A_P, PS = X + 9216, X + 9728, X + 10240, 272
A_WUV, A_WO = 0, 32768
B_K, B_V, B_Q, B_P, B_FL, B_WO = 0, 65536, X, X + 2048, X + 4096, 0
LDS = 163840
WS, SX, SWQ, SWO, M1, M2, M3, SOUT = ("s[44:47]", "s[48:51]", "s[52:55]", "s[56:59]", "s[60:63]", "s[64:67]", "s[68:71]", "s[72:75]")
sT, sT2, sH, sQ, sHL, sCH, sHH, sROLE, sIDX, sPLO, sPHI, sCNT, sK = ["s%d" % i for i in range(76, 89)]
KSCALE = 0x3E0293EE
import struct
KSCALE = struct.unpack("<I", struct.pack("<f", math.log2(math.e) / math.sqrt(128.0)))[0]
vL, vJ, vG, vFF, v11 = "v1", "v2", "v3", "v10", "v11"
POLL_LIMIT = 1 << 14


def vr(a, n=1):
    return "v%d" % a if n == 1 else "v[%d:%d]" % (a, a + n - 1)


class G(Asm):
    def __init__(s, **o):
        super().__init__()
        s.o = dict(WA=31, WB1=15, WB2=31, stamps=False, pretouch=True, wo_late=False)
        s.o.update(o)
        s.nst = 0

    def stamp(s, k):
        if s.o["stamps"]:
            s("s_memrealtime s[14:15]\ns_waitcnt lgkmcnt(0)\ns_mov_b32 s%d, s14" % (90 + k))

    def srd(s, name, lo, nbytes):
        r = int(name[2:4])
        s(f"s_mov_b32 s{r}, s{lo}\ns_mov_b32 s{r+1}, s{lo+1}\ns_mov_b32 s{r+2}, {nbytes}\ns_mov_b32 s{r+3}, 0x20000")

    def srd_sel(s, name, loA, loB, nbytes):
        r = int(name[2:4])
        s(f"s_cselect_b32 s{r}, s{loA}, s{loB}\ns_cselect_b32 s{r+1}, s{loA+1}, s{loB+1}\ns_mov_b32 s{r+2}, {nbytes}\ns_mov_b32 s{r+3}, 0x20000")

    def epoch(s):
        s(f"s_lshl_b32 s4, {sROLE}, 8\ns_load_dword {sT}, s[40:41], s4")

    def epoch_fin(s):
        s(f"""s_add_u32 {sT}, {sT}, 1
        s_and_b32 s12, {sT}, 2
        s_lshl_b32 s12, s12, 15
        s_and_b32 {sT2}, {sT}, 1
        s_or_b32 {sT2}, {sT2}, s12""")

    def tagcheck(s, dws, T, tmp):
        cur = []
        for k in range(0, len(dws), 2):
            t = tmp[k // 2]
            s(f"v_bitop3_b32 v{t}, v{dws[k]}, v{dws[k+1]}, {T} bitop3:0x7e")
            cur.append(t)
        while len(cur) > 1:
            nxt = []
            i = 0
            while i < len(cur):
                if len(cur) - i >= 3:
                    s(f"v_or3_b32 v{cur[i]}, v{cur[i]}, v{cur[i+1]}, v{cur[i+2]}"); nxt.append(cur[i]); i += 3
                elif len(cur) - i == 2:
                    s(f"v_or_b32 v{cur[i]}, v{cur[i]}, v{cur[i+1]}"); nxt.append(cur[i]); i += 2
                else:
                    nxt.append(cur[i]); i += 1
            cur = nxt
        return cur[0]

    def poll(s, loads, check):
        lp, dn = s.lab("Lp"), s.lab("Ld")
        s(f"s_mov_b32 {sCNT}, {POLL_LIMIT}\n{lp}:")
        loads()
        s("s_waitcnt vmcnt(0)")
        t = check()
        s(f"""v_cmp_ne_u32 vcc, 0, v{t}
        s_cbranch_vccz {dn}
        s_sub_u32 {sCNT}, {sCNT}, 1
        s_cbranch_scc0 {lp}
        {dn}:""")

    def ldsflag_wait(s, addr_v, val, tmpv):
        lp, dn = s.lab("Lf"), s.lab("Lg")
        s(f"""s_mov_b32 {sCNT}, {POLL_LIMIT*4}
        {lp}:
        ds_read_b32 v{tmpv}, {addr_v}
        s_waitcnt lgkmcnt(0)
        v_cmp_gt_u32 vcc, {val}, v{tmpv}
        s_cbranch_vccz {dn}
        s_sub_u32 {sCNT}, {sCNT}, 1
        s_cbranch_scc0 {lp}
        {dn}:""")

    def allred_g(s, op, r, t):
        s(f"v_mov_b32 v{t}, v{r}\nv_permlane16_swap_b32 v{r}, v{t}\n{op} v{r}, v{r}, v{t}")
        s(f"v_mov_b32 v{t}, v{r}\nv_permlane32_swap_b32 v{r}, v{t}\n{op} v{r}, v{r}, v{t}")

    def allred_row(s, op, r, steps):
        for k in steps:
            s(f"{op}_dpp v{r}, v{r}, v{r} row_ror:{k} row_mask:0xf bank_mask:0xf")

    def exec_mask(s, m32):
        s(f"s_mov_b32 exec_lo, {m32:#x}\ns_mov_b32 exec_hi, {m32:#x}")

    def exec_all(s):
        s("s_mov_b64 exec, -1")

    def wo_voff(s, dst, lin, t0, t1):
        s(f"""v_mul_u32_u24 v{t0}, 14564, v{lin}
        v_lshrrev_b32 v{t0}, 20, v{t0}
        v_mul_u32_u24 v{t1}, 72, v{t0}
        v_sub_u32 v{t1}, v{lin}, v{t1}
        v_lshrrev_b32 v{dst}, 1, v{t0}
        v_and_b32 v{dst}, 2, v{dst}
        v_xor_b32 v{t1}, v{t1}, v{dst}
        v_lshrrev_b32 v{dst}, 2, v{t0}
        v_and_b32 v{dst}, 4, v{dst}
        v_xor_b32 v{t1}, v{t1}, v{dst}
        v_mul_u32_u24 v{t0}, 1152, v{t0}
        v_lshl_add_u32 v{dst}, v{t1}, 4, v{t0}""")

    def s5_addr(s, WOI, rows_buf, rows_per):
        s(f"""v_lshrrev_b32 v4, 2, {vJ}
        v_and_b32 v5, 1, v4
        v_lshrrev_b32 v6, 1, v4
        v_lshl_add_u32 v6, {vG}, 2, v6
        v_lshl_add_u32 v6, v5, 4, v6
        v_mul_u32_u24 v6, 1152, v6
        v_and_b32 v7, 1, {vG}
        v_lshl_or_b32 v7, v5, 1, v7
        v_lshlrev_b32 v7, 1, v7
        v_bfe_u32 v8, {vJ}, 1, 1
        v_xor_b32 v7, v7, v8
        s_and_b32 s4, s3, 3
        s_lshl_b32 s4, s4, 1
        v_xor_b32 v7, s4, v7
        v_lshl_add_u32 v6, v7, 4, v6
        v_and_b32 v8, 1, {vJ}
        v_lshl_add_u32 v6, v8, 3, v6
        v_add_u32 v240, {WOI + 1024}, v6
        s_lshr_b32 s4, s3, 2
        s_lshl_b32 s4, s4, 7
        s_add_u32 s4, s4, {WOI}
        v_add_u32 v239, s4, v6
        s_lshl_b32 s4, {sHL}, 2
        s_add_u32 s4, s4, {sQ}
        s_mul_i32 s4, s4, {rows_per * 64}
        s_add_u32 s4, s4, {rows_buf}
        v_lshlrev_b32 v241, 6, {vJ}
        v_lshl_add_u32 v241, {vG}, 4, v241
        v_add_u32 v241, s4, v241
        s_mul_i32 s4, {sROLE}, {36 * 8192}
        s_lshl_b32 s5, {sIDX}, 6
        s_add_u32 s4, s4, s5
        s_add_u32 s4, s4, {O5}
        s_lshl_b32 s5, s3, 13
        s_add_u32 s5, s5, s4
        v_lshlrev_b32 v242, 16, {vG}
        v_lshl_add_u32 v242, {vJ}, 2, v242
        v_add_u32 v242, s5, v242
        s_and_b32 s5, s3, 3
        s_add_u32 s5, s5, 32
        s_lshl_b32 s5, s5, 13
        s_add_u32 s5, s5, s4
        v_lshlrev_b32 v243, 2, {vJ}
        v_add_u32 v243, s5, v243""")

    def s5_trreads(s):
        for u in range(4):
            s(f"ds_read_b64_tr_b16 {vr(112+4*u,2)}, v239 offset:{256*u}")
            s(f"ds_read_b64_tr_b16 {vr(114+4*u,2)}, v239 offset:{256*u+2304}")
        s(f"ds_read_b64_tr_b16 {vr(128,2)}, v240\nds_read_b64_tr_b16 {vr(130,2)}, v240 offset:2304")

    def s5_out(s, y):
        s(f"""v_permlane32_swap_b32 v{y[0]}, v{y[2]}
        v_permlane32_swap_b32 v{y[1]}, v{y[3]}
        v_mov_b32 v4, v{y[4]}
        v_add_f32 v{y[0]}, v{y[0]}, v{y[2]}
        v_add_f32 v{y[1]}, v{y[1]}, v{y[3]}
        v_permlane32_swap_b32 v{y[4]}, v4
        v_add_f32 v{y[4]}, v{y[4]}, v4
        v_permlane16_swap_b32 v{y[0]}, v{y[1]}
        v_mov_b32 v4, v{y[4]}
        v_add_f32 v{y[0]}, v{y[0]}, v{y[1]}
        v_bfi_b32 v{y[0]}, {vFF}, {sT}, v{y[0]}
        buffer_store_dword v{y[0]}, v242, {WS}, 0 offen sc1
        v_permlane16_swap_b32 v{y[4]}, v4
        v_add_f32 v{y[4]}, v{y[4]}, v4
        v_bfi_b32 v{y[4]}, {vFF}, {sT}, v{y[4]}
        s_cmp_ge_u32 s3, 4
        s_cbranch_scc1 L_fin
        s_mov_b64 exec, 0xffff
        buffer_store_dword v{y[4]}, v243, {WS}, 0 offen sc1
        s_branch L_exit""")

    def weights(s, rowsteps):
        s("v_mov_b32 v53, v48")
        s.allred_row("v_max_f32", 53, rowsteps)
        s.allred_g("v_max_f32", 53, 54)
        s("v_sub_f32 v52, v48, v53\nv_exp_f32 v52, v52\nv_mul_f32 v53, v52, v49")
        s.allred_row("v_add_f32", 53, rowsteps)
        s.allred_g("v_add_f32", 53, 54)
        s("v_rcp_f32 v53, v53\nv_mul_f32 v52, v52, v53")

    def wsum(s, y, D):
        s(f"v_mul_f32_dpp v{y}, v52, v{D} row_newbcast:0 row_mask:0xf bank_mask:0xf")
        for r in range(1, 4):
            s(f"v_fmac_f32_dpp v{y}, v52, v{D+r} row_newbcast:{r} row_mask:0xf bank_mask:0xf")

    def a_addr(s):
        s(f"""v_xor_b32 v4, {vG}, {vJ}
        v_lshlrev_b32 v4, 4, v4
        s_lshl_b32 s4, s3, 14
        v_lshl_add_u32 v5, {vJ}, 10, s4
        v_add_u32 v200, v5, v4
        v_xor_b32 v201, 64, v200
        v_xor_b32 v202, 0x80, v200
        v_xor_b32 v203, 0xc0, v200
        v_lshrrev_b32 v5, 3, {vJ}
        v_lshlrev_b32 v5, 14, v5
        v_and_b32 v6, 7, {vJ}
        v_lshl_add_u32 v5, v6, 10, v5
        v_add_u32 v5, {X}, v5
        v_add_u32 v204, v5, v4
        v_xor_b32 v205, 64, v204
        v_xor_b32 v206, 0x80, v204
        v_xor_b32 v207, 0xc0, v204""")
        s(f"""v_lshrrev_b32 v4, 2, {vJ}
        v_lshlrev_b32 v4, 1, v4
        v_lshl_add_u32 v5, {vG}, 3, v4
        v_lshlrev_b32 v5, 10, v5
        v_xor_b32 v6, s3, {vG}
        v_and_b32 v6, 1, v6
        v_lshl_add_u32 v6, v6, 3, v4
        v_bfe_u32 v7, {vJ}, 1, 1
        v_add_u32 v6, v6, v7
        v_lshl_add_u32 v5, v6, 4, v5
        v_and_b32 v7, 1, {vJ}
        v_lshl_add_u32 v5, v7, 3, v5
        s_lshr_b32 s4, s3, 1
        s_lshl_b32 s4, s4, 8
        v_add_u32 v208, s4, v5""")
        for k in range(1, 8):
            s(f"v_xor_b32 v{208+k}, {k << 4}, v208")
        s(f"""v_mul_u32_u24 v4, {PS}, {vJ}
        v_lshl_add_u32 v219, {vG}, 4, v4
        v_add_u32 v219, {A_P}, v219
        v_lshrrev_b32 v5, 1, {vG}
        v_lshl_add_u32 v4, v5, 4, v4
        v_and_b32 v5, 1, {vG}
        v_lshl_add_u32 v4, v5, 2, v4
        s_lshl_b32 s4, s3, 5
        s_add_u32 s4, s4, {A_P}
        v_add_u32 v216, s4, v4
        v_lshlrev_b32 v4, 5, {vJ}
        v_add_u32 v218, {A_MX}, v4
        s_lshl_b32 s4, s3, 2
        v_add_u32 v217, s4, v218
        s_lshl_b32 s4, {sHH}, 20
        s_lshl_b32 s5, s3, 13
        s_add_u32 s4, s4, s5
        s_lshl_b32 s5, {sCH}, 7
        s_add_u32 s4, s4, s5
        s_add_u32 s4, s4, {P34}
        v_lshlrev_b32 v4, 16, {vJ}
        v_lshl_add_u32 v4, {vG}, 4, v4
        v_add_u32 v220, s4, v4
        s_lshl_b32 s4, {sHH}, 14
        s_lshl_b32 s5, {sCH}, 4
        s_add_u32 s4, s4, s5
        s_add_u32 s4, s4, {ST34}
        v_lshl_add_u32 v221, {vJ}, 10, s4""")
        s(f"""s_and_b32 s4, s3, 1
        s_lshl_b32 s4, s4, 3
        v_lshl_add_u32 v4, {vG}, 1, s4
        v_xor_b32 v4, v4, {vJ}
        v_lshlrev_b32 v4, 4, v4
        v_lshl_add_u32 v222, {vG}, 13, v4""")
        for u in range(5):
            s(f"s_lshl_b32 s4, s3, 6\ns_add_u32 s4, s4, {512*u}\nv_add_u32 v9, s4, {vL}")
            s.wo_voff(223 + u, 9, 4, 5)
        s(f"""v_lshrrev_b32 v4, 2, {vJ}
        v_lshl_add_u32 v5, {vG}, 2, v4
        v_and_b32 v6, 7, v5
        v_lshlrev_b32 v6, 1, v6
        v_bfe_u32 v7, {vJ}, 1, 1
        v_xor_b32 v6, v6, v7
        v_lshlrev_b32 v5, 8, v5
        v_lshl_add_u32 v5, v6, 4, v5
        v_and_b32 v7, 1, {vJ}
        v_lshl_add_u32 v5, v7, 3, v5
        s_and_b32 s4, s3, 1
        s_lshl_b32 s4, s4, 14
        s_add_u32 s4, s4, {A_WUV}
        v_add_u32 v228, s4, v5""")
        for k in range(1, 8):
            s(f"v_xor_b32 v{228+k}, {k << 5}, v228")
        s(f"""s_lshl_b32 s4, {sHL}, 16
        s_lshl_b32 s5, {sQ}, 14
        s_add_u32 s4, s4, s5
        s_and_b32 s5, s3, 1
        s_lshl_b32 s5, s5, 13
        s_add_u32 s4, s4, s5
        s_lshr_b32 s6, s3, 1
        s_lshl_b32 s5, s6, 11
        s_add_u32 s4, s4, s5
        s_add_u32 s4, s4, {P34}
        v_lshlrev_b32 v4, 7, {vJ}
        v_lshl_add_u32 v4, {vG}, 4, v4
        v_add_u32 v236, s4, v4
        v_lshrrev_b32 v4, 2, {vJ}
        v_add_u32 v4, s6, v4
        v_and_b32 v4, 3, v4
        v_lshlrev_b32 v4, 2, v4
        v_add_u32 v4, v4, {vG}
        v_and_b32 v5, 3, {vJ}
        v_lshl_add_u32 v4, v4, 2, v5
        s_lshl_b32 s4, {sHL}, 10
        s_add_u32 s4, s4, {ST34}
        v_lshl_add_u32 v237, v4, 4, s4
        s_lshl_b32 s4, {sHL}, 13
        s_lshl_b32 s5, {sQ}, 9
        s_add_u32 s4, s4, s5
        s_lshl_b32 s5, s3, 6
        s_add_u32 s4, s4, s5
        s_add_u32 s4, s4, {C45}
        v_lshlrev_b32 v4, 11, {vG}
        v_lshl_add_u32 v4, {vJ}, 2, v4
        v_add_u32 v238, s4, v4""")
        s.s5_addr(A_WO, C45, 32)

    def b_addr(s):
        s(f"""v_lshrrev_b32 v4, 2, {vJ}
        v_lshl_add_u32 v5, {vG}, 2, v4
        v_and_b32 v6, 7, v5
        v_lshlrev_b32 v6, 1, v6
        v_bfe_u32 v7, {vJ}, 1, 1
        v_xor_b32 v6, v6, v7
        s_and_b32 s4, s3, 3
        s_lshl_b32 s4, s4, 2
        v_xor_b32 v6, s4, v6
        v_lshlrev_b32 v5, 8, v5
        v_lshl_add_u32 v5, v6, 4, v5
        v_and_b32 v7, 1, {vJ}
        v_lshl_add_u32 v5, v7, 3, v5
        s_lshr_b32 s6, s3, 2
        s_lshl_b32 s4, s6, 15
        s_add_u32 s4, s4, {B_V}
        v_add_u32 v208, s4, v5
        v_xor_b32 v209, 32, v208
        v_and_b32 v4, 1, v4
        v_lshlrev_b32 v4, 8, v4
        v_lshl_add_u32 v4, {vG}, 4, v4
        s_lshl_b32 s4, s6, 9
        s_add_u32 s4, s4, {B_P}
        v_add_u32 v219, s4, v4
        s_lshl_b32 s4, {sCH}, 13
        s_and_b32 s5, s3, 3
        s_lshl_b32 s5, s5, 10
        s_add_u32 s4, s4, s5
        s_lshl_b32 s5, {sHH}, 1
        s_add_u32 s5, s5, s6
        s_lshl_b32 s5, s5, 6
        s_add_u32 s4, s4, s5
        s_add_u32 s4, s4, {OB}
        v_lshlrev_b32 v4, 12, {vG}
        v_lshl_add_u32 v4, {vJ}, 2, v4
        v_add_u32 v220, s4, v4
        v_and_b32 v4, 3, {vJ}
        v_lshl_add_u32 v4, {vG}, 2, v4
        s_lshl_b32 s4, {sHL}, 8
        s_add_u32 s4, s4, {STB}
        v_lshl_add_u32 v237, v4, 4, s4""")
        s.s5_addr(B_WO, OB, 16)

    def q_stage(s, a, b, addr, off):
        for k in range(4):
            s(f"v_add_f32 v{a+k}, v{a+k}, v{b+k}")
        s(f"""v_permlane32_swap_b32 v{a}, v{a+2}
        v_permlane32_swap_b32 v{a+1}, v{a+3}
        v_add_f32 v{a}, v{a}, v{a+2}
        v_add_f32 v{a+1}, v{a+1}, v{a+3}
        v_cvt_pk_bf16_f32 v{a}, v{a}, v{a+1}
        ds_write_b32 v{addr}, v{a} offset:{off}""")

    def build(s):
        o = s.o
        s(f"""s_cmp_ge_u32 s2, 256
        s_cbranch_scc1 L_exit0
        s_load_dwordx16 s[16:31], s[0:1], 0
        s_load_dwordx8 s[32:39], s[0:1], 64
        s_load_dwordx2 s[40:41], s[0:1], 104""")
        if o["stamps"] or o.get("spin"):
            s("s_memrealtime s[14:15]")
        s(f"""v_lshrrev_b32 v4, 6, v0
        v_and_b32 {vL}, 63, v0
        v_and_b32 {vJ}, 15, v0
        v_readfirstlane_b32 s3, v4
        v_lshrrev_b32 {vG}, 4, {vL}
        s_lshr_b32 {sROLE}, s2, 7
        s_and_b32 {sIDX}, s2, 127
        s_and_b32 s4, s2, 7
        s_lshr_b32 s5, {sIDX}, 3
        s_and_b32 {sQ}, s5, 3
        s_lshr_b32 s6, s5, 2
        s_lshl_b32 s6, s6, 3
        s_add_u32 s6, s6, s4
        s_lshr_b32 s7, s5, 1
        s_lshl_b32 s7, s7, 3
        s_add_u32 s7, s7, s4
        s_and_b32 s8, s5, 1
        s_lshr_b32 s9, s5, 3
        s_lshl_b32 s9, s9, 3
        s_add_u32 s9, s9, s4
        s_and_b32 s10, s5, 7
        s_lshr_b32 s11, s10, 2
        s_lshl_b32 s12, s9, 1
        s_add_u32 s11, s11, s12
        s_cmp_eq_u32 {sROLE}, 0
        s_cselect_b32 {sHL}, s6, s11
        s_cselect_b32 {sCH}, s7, s9
        s_cselect_b32 {sHH}, s8, s10
        s_lshl_b32 {sH}, {sROLE}, 5
        s_add_u32 {sH}, {sH}, {sHL}
        v_lshrrev_b32 v4, 3, {vL}
        v_mul_u32_u24 v22, 36, v4
        v_mul_u32_u24 v21, {18*8192}, v4
        v_and_b32 v4, 7, {vL}
        v_lshl_add_u32 v21, v4, 4, v21
        s_mul_i32 s12, {sQ}, 288
        s_mul_i32 s13, {sQ}, {144*8192}
        s_lshl_b32 s4, {sHL}, 8
        s_add_u32 s13, s13, s4
        s_sub_u32 s4, s3, 1
        s_lshl_b32 s4, s4, 7
        s_add_u32 s13, s13, s4
        v_mov_b32 {vFF}, 0xff
        v_mov_b32 {v11}, 0x10001
        s_mov_b32 {sK}, {KSCALE:#x}
        s_cmp_eq_u32 {sROLE}, 0
        s_waitcnt lgkmcnt(0)""")
        if o.get("spin"): s("s_mov_b32 s89, s14")
        if o["stamps"]:
            s("s_mov_b32 s90, s14")
            for k in range(1, 12): s(f"s_mov_b32 s{90+k}, 0")
        s.srd_sel(SX, 16, 28, 1152)
        s.srd_sel(SWQ, 20, 34, 4718592)
        s.srd_sel(SWO, 26, 36, 4718592)
        s(f"s_cselect_b32 s60, s18, s30\ns_cselect_b32 s61, s19, s31\ns_mov_b32 s62, 33554432\ns_cmov_b32 s62, 8388608\ns_mov_b32 s63, 0x20000")
        s(f"s_cselect_b32 s64, s22, s32\ns_cselect_b32 s65, s23, s33\ns_mov_b32 s66, 33554432\ns_cmov_b32 s66, 4194304\ns_mov_b32 s67, 0x20000")
        s.srd(M3, 24, 4194304)
        s.srd(SOUT, 38, 2304)
        s.srd(WS, 40, (STAMP + (1 << 20)) if o["stamps"] else WS_BYTES)
        s(f"""s_cmp_eq_u32 s3, 0
        s_cbranch_scc1 L_loader
        s_cmp_gt_u32 s3, 2
        s_cbranch_scc1 L_idle""")
        s(f"""buffer_load_dwordx4 v[12:15], v22, {SX}, s12 offen
        buffer_load_dwordx4 v[16:19], v22, {SX}, s12 offen offset:16
        buffer_load_dword v20, v22, {SX}, s12 offen offset:32""")
        for u in range(18):
            s(f"buffer_load_dwordx4 {vr(40+4*u,4)}, v21, {SWQ}, s13 offen nt")
            if u < 17: s("s_add_u32 s13, s13, 8192")
        def s1(role):
            s(f"s_mov_b32 {sPLO}, 0x05040100\ns_mov_b32 {sPHI}, 0x07060302")
            for e in range(8): s(f"v_mov_b32 v{24+e}, 0")
            if True:
                extra = 16 if role == 0 else 0
                for i in range(9):
                    s(f"s_waitcnt vmcnt({16 - 2*i + extra})")
                    a, b = 40 + 8 * i, 44 + 8 * i
                    for k in range(4):
                        s(f"v_perm_b32 v{32+2*k}, v{b+k}, v{a+k}, {sPLO}\nv_perm_b32 v{33+2*k}, v{b+k}, v{a+k}, {sPHI}")
                    for e in range(8):
                        s(f"v_dot2c_f32_bf16 v{24+e}, v{32+e}, v{12+i}")
            s("s_nop 2")
            for e in range(4): s(f"v_permlane32_swap_b32 v{24+e}, v{28+e}")
            for e in range(4): s(f"v_add_f32 v{24+e}, v{24+e}, v{28+e}")
            for e in range(2): s(f"v_permlane16_swap_b32 v{24+e}, v{26+e}")
            for e in range(2): s(f"v_add_f32 v{24+e}, v{24+e}, v{26+e}")
            s(f"""v_and_b32 v4, 7, {vL}
            v_lshlrev_b32 v4, 5, v4
            v_lshl_add_u32 v4, {vG}, 3, v4
            s_lshl_b32 s4, {sH}, 2
            s_add_u32 s4, s4, {sQ}
            s_lshl_b32 s4, s4, 9
            s_sub_u32 s5, s3, 1
            s_lshl_b32 s5, s5, 8
            s_add_u32 s4, s4, s5
            s_add_u32 s4, s4, {Q12}
            s_waitcnt lgkmcnt(0)""")
            s.epoch_fin()
            for e in range(2): s(f"v_add_f32_dpp v{24+e}, v{24+e}, v{24+e} row_ror:8 row_mask:0xf bank_mask:0xf")
            for e in range(2): s(f"v_bfi_b32 v{24+e}, {vFF}, {sT}, v{24+e}")
            s.exec_mask(0x00ff00ff)
            s(f"buffer_store_dwordx2 v[24:25], v4, {WS}, s4 offen sc1")
            s.exec_all()
            s.stamp(1)
            s(f"""v_and_b32 v4, 31, {vL}
            v_lshrrev_b32 v5, 5, {vL}
            v_lshlrev_b32 v6, 4, v4
            v_lshl_add_u32 v22, v5, 9, v6
            v_lshlrev_b32 v5, 2, v5
            v_lshl_add_u32 v21, v4, 3, v5""")
        s(f"s_cmp_eq_u32 {sROLE}, 0\ns_cbranch_scc0 L_wB")
        for q in range(4):
            s(f"""v_add_u32 v4, {4*q}, {vG}
            v_xor_b32 v4, v4, {vJ}
            v_lshlrev_b32 v4, 4, v4
            v_lshl_add_u32 v{112+q}, {vG}, 13, v4""")
        s(f"""s_sub_u32 s4, s3, 1
        s_lshl_b32 s8, s4, 14
        s_add_u32 s8, s8, {X}
        s_lshl_b32 s5, {sQ}, 20
        s_lshl_b32 s4, s4, 19
        s_add_u32 s5, s5, s4
        s_lshl_b32 s4, {sHL}, 8
        s_add_u32 s5, s5, s4
        s_mov_b32 m0, s8""")
        for n in range(16):
            s(f"buffer_load_dwordx4 v{112+(n&3)}, {M2}, s5 offen nt lds")
            if n < 15: s("s_add_u32 m0, m0, 1024\ns_add_u32 s5, s5, 32768")
        s("s_barrier")
        s.epoch()
        s.a_addr()
        s1(0)
        s(f"""v_xor_b32 v4, {vG}, {vJ}
        v_lshlrev_b32 v4, 4, v4
        v_lshl_add_u32 v4, {vJ}, 8, v4
        v_add_u32 v180, s8, v4
        v_xor_b32 v181, 64, v180
        v_xor_b32 v182, 0x80, v180
        v_xor_b32 v183, 0xc0, v180
        s_add_u32 s9, s8, 8192
        v_add_u32 v21, s9, v21
        v_lshl_add_u32 v23, {vG}, 4, s9
        s_lshl_b32 s4, {sH}, 11
        s_add_u32 s4, s4, {Q12}
        s_waitcnt vmcnt(1)""")
        for t in range(4):
            for k in range(4):
                s(f"ds_read_b128 {vr(116+16*t+4*k,4)}, v{180+k} offset:{4096*t}")
        def ld():
            s(f"buffer_load_dwordx4 v[40:43], v22, {WS}, s4 offen sc1\nbuffer_load_dwordx4 v[44:47], v22, {WS}, s4 offen offset:1024 sc1")
        def ck():
            t = s.tagcheck(list(range(40, 48)), sT, [32, 33, 34, 35]); s(f"v_and_b32 v{t}, {vFF}, v{t}"); return t
        s.poll(ld, ck)
        s.stamp(2)
        s("s_waitcnt lgkmcnt(0)")
        s.q_stage(40, 44, 21, 0)
        s("s_waitcnt lgkmcnt(0)")
        for k in range(4): s(f"ds_read_b128 {vr(56+4*k,4)}, v23 offset:{64*k}")
        s(f"""v_lshlrev_b32 v5, 5, {vJ}
        v_lshl_add_u32 v5, {vG}, 3, v5
        s_lshl_b32 s4, {sHL}, 10
        s_lshl_b32 s5, {sQ}, 8
        s_add_u32 s4, s4, s5
        s_sub_u32 s5, s3, 1
        s_lshl_b32 s5, s5, 7
        s_add_u32 s4, s4, s5
        s_add_u32 s4, s4, {QABS}
        v_and_b32 v6, 3, {vJ}""")
        for k in range(4):
            s(f"s_waitcnt lgkmcnt({3-k})")
            for t in range(4):
                s(f"v_mfma_f32_16x16x32_bf16 {vr(72+4*t,4)}, {vr(116+16*t+4*k,4)}, {vr(56+4*k,4)}, {vr(72+4*t,4) if k else 0}")
        s("v_cmp_eq_u32 vcc, 1, v6\nv_cmp_eq_u32 s[6:7], 2, v6\nv_cmp_eq_u32 s[10:11], 3, v6")
        for t in range(4):
            s(f"v_cvt_pk_bf16_f32 v{72+4*t}, v{72+4*t}, v{73+4*t}\nv_cvt_pk_bf16_f32 v{73+4*t}, v{74+4*t}, v{75+4*t}")
        for d in range(2):
            s(f"""v_cndmask_b32 v{72+d}, v{72+d}, v{76+d}, vcc
            v_cndmask_b32 v{72+d}, v{72+d}, v{80+d}, s[6:7]
            v_cndmask_b32 v{72+d}, v{72+d}, v{84+d}, s[10:11]
            v_bfi_b32 v{72+d}, {v11}, {sT2}, v{72+d}""")
        s.exec_mask(0x000f000f)
        s(f"buffer_store_dwordx2 v[72:73], v5, {WS}, s4 offen sc1")
        s.exec_all()
        s.stamp(3)
        s(f"""s_lshl_b32 s4, {sHH}, 14
        s_sub_u32 s5, s3, 1
        s_lshl_b32 s6, s5, 13
        s_add_u32 s4, s4, s6
        s_add_u32 s4, s4, {QABS}
        s_add_u32 s6, s4, 4096
        v_lshlrev_b32 v22, 4, {vL}
        s_lshl_b32 s5, s5, 7
        v_xor_b32 v21, s5, v22
        v_add_u32 v21, s8, v21""")
        def ld():
            for u in range(8):
                s(f"buffer_load_dwordx4 {vr(40+4*u,4)}, v22, {WS}, {'s4' if u < 4 else 's6'} offen offset:{1024*(u&3)} sc1")
        def ck():
            t = s.tagcheck(list(range(40, 72)), sT2, list(range(72, 88))); s(f"v_and_b32 v{t}, {v11}, v{t}"); return t
        s.poll(ld, ck)
        s.stamp(4)
        for u in range(8):
            s(f"v_xor_b32 v{88+u}, {16*u}, v21\nds_write_b128 v{88+u}, {vr(40+4*u,4)} offset:{1024*u}")
        s("s_waitcnt lgkmcnt(0)\ns_branch L_A3")
        s("L_wB:\ns_barrier")
        s.epoch()
        s.b_addr()
        s1(1)
        s(f"""s_sub_u32 s8, s3, 1
        s_lshl_b32 s9, s8, 9
        s_add_u32 s9, s9, {B_Q}
        v_add_u32 v21, s9, v21
        v_and_b32 v4, 1, {vJ}
        v_lshlrev_b32 v4, 8, v4
        v_lshl_add_u32 v4, {vG}, 4, v4
        v_add_u32 v23, s9, v4
        s_lshl_b32 s4, {sCH}, 12
        s_add_u32 s4, s4, {Q12 + 32*2048}
        v_xor_b32 v4, {vG}, {vJ}
        v_lshlrev_b32 v4, 4, v4
        v_lshl_add_u32 v4, {vJ}, 8, v4
        s_lshl_b32 s5, s8, 15
        v_add_u32 v180, s5, v4
        v_xor_b32 v181, 64, v180
        v_xor_b32 v182, 0x80, v180
        v_xor_b32 v183, 0xc0, v180
        v_mov_b32 v184, {B_FL}""")
        def ld():
            for u in range(4): s(f"buffer_load_dwordx4 {vr(40+4*u,4)}, v22, {WS}, s4 offen offset:{1024*u} sc1")
        def ck():
            t = s.tagcheck(list(range(40, 56)), sT, list(range(72, 80))); s(f"v_and_b32 v{t}, {vFF}, v{t}"); return t
        s.poll(ld, ck)
        s.stamp(2)
        s.q_stage(40, 44, 21, 0)
        s.q_stage(48, 52, 21, 256)
        s("s_waitcnt lgkmcnt(0)")
        for k in range(4): s(f"ds_read_b128 {vr(56+4*k,4)}, v23 offset:{64*k}")
        s("s_add_u32 s5, s8, 1")
        s.ldsflag_wait("v184", "s5", 4)
        s.stamp(3)
        seq = [(t, k) for t in range(8) for k in range(4)]
        def rd(i): t, k = seq[i]; s(f"ds_read_b128 {vr(72+4*(i%8),4)}, v{180+k} offset:{4096*t}")
        for i in range(8): rd(i)
        for i, (t, k) in enumerate(seq):
            s(f"s_waitcnt lgkmcnt({min(7, 31-i)})")
            s(f"v_mfma_f32_16x16x32_bf16 {vr(112+4*t,4)}, {vr(72+4*(i%8),4)}, {vr(56+4*k,4)}, {vr(112+4*t,4) if k else 0}")
            if i + 8 < 32: rd(i + 8)
        s("v_mov_b32 v4, 1\nds_add_u32 v184, v4 offset:4")
        s("v_max3_f32 v40, v112, v113, v114")
        for r in range(115, 143, 2): s(f"v_max3_f32 v40, v40, v{r}, v{r+1}")
        s("v_max_f32 v40, v40, v143")
        s.allred_g("v_max_f32", 40, 4)
        s(f"v_mul_f32 v40, {sK}, v40")
        for r in range(112, 144): s(f"v_fma_f32 v{r}, v{r}, {sK}, -v40")
        for r in range(112, 144): s(f"v_exp_f32 v{r}, v{r}")
        s("v_add_f32 v41, v112, v113\nv_add_f32 v42, v114, v115")
        for r in range(116, 144, 2): s(f"v_add_f32 v41, v41, v{r}\nv_add_f32 v42, v42, v{r+1}")
        s("v_add_f32 v41, v41, v42")
        for r in range(16): s(f"v_cvt_pk_bf16_f32 v{72+r}, v{112+2*r}, v{113+2*r}")
        s.allred_g("v_add_f32", 41, 4)
        s(f"""v_lshlrev_b32 v4, 8, {vJ}
        v_lshl_add_u32 v4, {vG}, 4, v4
        s_lshl_b32 s4, s8, 9
        s_add_u32 s4, s4, {B_P}
        v_add_u32 v4, s4, v4
        v_mov_b32 v42, {sT}
        v_mov_b32 v43, {sT}
        s_lshl_b32 s4, {sCH}, 9
        s_lshl_b32 s5, {sHH}, 1
        s_add_u32 s5, s5, s8
        s_lshl_b32 s5, s5, 4
        s_add_u32 s4, s4, s5
        s_add_u32 s4, s4, {STB}
        v_lshlrev_b32 v5, 8, {vJ}""")
        s.exec_mask(0x00030003)
        for k in range(4): s(f"ds_write_b128 v4, {vr(72+4*k,4)} offset:{64*k}")
        s(f"s_mov_b64 exec, 3\nbuffer_store_dwordx4 v[40:43], v5, {WS}, s4 offen sc1")
        s.exec_all()
        s.stamp(4)
        s("s_waitcnt lgkmcnt(0)\ns_branch L_B3")
        s(f"""L_idle:
        v_mov_b32 v4, {B_FL}
        v_mov_b32 v6, 0
        v_mov_b32 v7, 0
        s_cmp_eq_u32 {sROLE}, 0
        s_cbranch_scc1 L_idleA
        ds_write_b64 v4, v[6:7]
        s_waitcnt lgkmcnt(0)
        s_barrier""")
        s.epoch()
        if o["pretouch"]:
            s(f"""s_cmp_lt_u32 s3, 4
            s_cbranch_scc1 L_nopt
            s_lshl_b32 s4, {sIDX}, 14
            s_and_b32 s5, s3, 3
            s_lshl_b32 s5, s5, 12
            s_add_u32 s4, s4, s5
            s_add_u32 s4, s4, {P34}
            v_lshlrev_b32 v4, 4, {vL}""")
            for u in range(4): s(f"buffer_load_dwordx4 {vr(40+4*u,4)}, v4, {WS}, s4 offen offset:{1024*u} sc1")
            s("L_nopt:")
        s.b_addr()
        s("s_waitcnt lgkmcnt(0)")
        s.epoch_fin()
        s("s_waitcnt vmcnt(0)\ns_branch L_B3")
        s("L_idleA:\ns_barrier")
        s.epoch()
        s.a_addr()
        s("s_waitcnt lgkmcnt(0)")
        s.epoch_fin()
        s("s_branch L_A3")
        s(f"""L_loader:
        s_cmp_eq_u32 {sROLE}, 0
        s_cbranch_scc0 L_loaderB
        v_lshlrev_b32 v40, 4, {vL}""")
        for k in range(1, 16): s(f"v_xor_b32 v{40+k}, {16*k}, v40")
        s(f"""s_lshl_b32 s8, {sCH}, 17
        s_lshl_b32 s9, {sHH}, 16
        s_mov_b32 s10, 8
        s_barrier""")
        s.epoch()
        s("L_ldA:")
        for q in range(4):
            s(f"s_mov_b32 m0, s9\ns_add_u32 s5, s8, s9\ns_add_u32 s9, s9, 4096")
            for k in range(4):
                s(f"buffer_load_dwordx4 v{40+4*q+k}, {M1}, s5 offen offset:{1024*k} nt lds\ns_waitcnt vmcnt({o['WA']})")
        s(f"""s_and_b32 s9, s9, 0x1ffff
        s_sub_u32 s10, s10, 1
        s_cmp_lg_u32 s10, 0
        s_cbranch_scc1 L_ldA""")
        s.a_addr()
        s("s_waitcnt lgkmcnt(0)")
        s.epoch_fin()
        s("s_waitcnt vmcnt(0)")
        s.stamp(1)
        s("s_branch L_A3")
        s("L_loaderB:")
        for q in range(4):
            s(f"""v_add_u32 v4, {4*q}, {vG}
            v_xor_b32 v4, v4, {vJ}
            v_lshlrev_b32 v4, 4, v4
            v_lshl_add_u32 v{40+q}, {vG}, 8, v4""")
        for q in range(2):
            s(f"""v_lshl_add_u32 v4, {vG}, 1, {8*q}
            v_xor_b32 v4, v4, {vJ}
            v_lshlrev_b32 v4, 4, v4
            v_lshl_add_u32 v{44+q}, {vG}, 8, v4""")
        s(f"""s_lshl_b32 s8, {sCH}, 21
        s_lshl_b32 s4, {sHH}, 16
        s_add_u32 s8, s8, s4
        s_add_u32 s8, s8, {6144*256}
        s_mov_b32 s9, 0
        v_mov_b32 v46, {B_FL}
        v_mov_b32 v47, 1
        v_mov_b32 v48, 2
        s_barrier""")
        s.epoch()
        W1, W2 = o["WB1"], o["WB2"]
        def grp(srd, voffs, W, ldsbase):
            s(f"s_add_u32 m0, s9, {ldsbase}\ns_add_u32 s5, s8, s9\ns_add_u32 s9, s9, 4096")
            for k in range(4):
                s(f"buffer_load_dwordx4 v{voffs[k]}, {srd}, s5 offen offset:{1024*k} nt lds\ns_waitcnt vmcnt({W})")
        g1 = 8 + (W1 + 3) // 4
        assert g1 <= 16
        s("L_ldK1:"); grp(M1, [40, 41, 42, 43], W1, B_K)
        s(f"s_cmp_lt_u32 s9, {g1*4096}\ns_cbranch_scc1 L_ldK1")
        s("ds_write_b32 v46, v47")
        if g1 < 16:
            s("L_ldK2:"); grp(M1, [40, 41, 42, 43], W1, B_K)
            s(f"s_cmp_lt_u32 s9, {16*4096}\ns_cbranch_scc1 L_ldK2")
        s("s_mov_b32 s9, 0")
        g2 = (W1 + 3) // 4
        s("L_ldV1:"); grp(M2, [44, 45, 44, 45], W1, B_V)
        s(f"s_cmp_lt_u32 s9, {g2*4096}\ns_cbranch_scc1 L_ldV1")
        s("ds_write_b32 v46, v48")
        s.stamp(1)
        s("L_ldV2:"); grp(M2, [44, 45, 44, 45], W2, B_V)
        s(f"s_cmp_lt_u32 s9, {16*4096}\ns_cbranch_scc1 L_ldV2")
        for n in range(9):
            s(f"v_add_u32 v9, {64*n}, {vL}")
            s.wo_voff(50 + n, 9, 4, 5)
        s.b_addr()
        s("v_add_u32 v46, 4, v46\ns_waitcnt lgkmcnt(0)")
        s.epoch_fin()
        s.ldsflag_wait("v46", "0x80", 4)
        s(f"""s_mul_i32 s8, {sHL}, 147456
        s_mul_i32 s4, {sQ}, 36864
        s_add_u32 s8, s8, s4
        s_mov_b32 m0, {B_WO}""")
        npre = min(36, W2)
        for n in range(36):
            if n == npre:
                s(f"s_waitcnt vmcnt({npre})")
                s.stamp(2)
                s("s_barrier")
            if n == 18:
                for k in range(9): s(f"v_xor_b32 v{50+k}, 64, v{50+k}")
            s(f"buffer_load_dwordx4 v{50+n%9}, {SWO}, s8 offen nt lds")
            if n < npre: s(f"s_waitcnt vmcnt({W2})")
            s("s_add_u32 m0, m0, 1024")
            if n % 9 == 8: s("s_add_u32 s8, s8, 9216")
        if npre == 36:
            s("s_waitcnt vmcnt(36)"); s.stamp(2); s("s_barrier")
        s("s_branch L_B3b")
        s("L_A3:\ns_barrier")
        s.stamp(5)
        def rdq(i):
            s(f"ds_read_b128 {vr(40+4*(i%7),4)}, v{200+(i&3)} offset:{256*(i>>2)}\nds_read_b128 {vr(72+4*(i%7),4)}, v{204+(i&3)} offset:{256*(i>>2)}")
        for i in range(7): rdq(i)
        pv = [(ks, t, e) for ks in range(4) for t in range(4) for e in range(2)]
        def rdpv(n):
            ks, t, e = pv[n]
            if n == 16:
                for k in range(8): s(f"v_add_u32 v{208+k}, 0x10000, v{208+k}")
            s(f"ds_read_b64_tr_b16 {vr(112+16*ks+4*t+2*e,2)}, v{208+2*t+e} offset:{32768*(ks&1)+1024*e}")
        for i in range(16):
            s("s_waitcnt lgkmcnt(12)")
            s(f"v_mfma_f32_16x16x32_bf16 v[104:107], {vr(40+4*(i%7),4)}, {vr(72+4*(i%7),4)}, {'v[104:107]' if i else 0}")
            if i + 7 < 16: rdq(i + 7)
            else:
                rdpv(2 * (i - 9)); rdpv(2 * (i - 9) + 1)
        for n in range(14, 32): rdpv(n)
        s("v_max3_f32 v108, v104, v105, v106\nv_max_f32 v108, v108, v107")
        s.allred_g("v_max_f32", 108, 4)
        s("ds_write_b32 v217, v108\ns_waitcnt lgkmcnt(0)\ns_barrier")
        s("ds_read_b128 v[40:43], v218\nds_read_b128 v[44:47], v218 offset:16\ns_waitcnt lgkmcnt(0)")
        s(f"""v_max3_f32 v40, v40, v41, v42
        v_max3_f32 v44, v44, v45, v46
        v_max3_f32 v40, v40, v43, v47
        v_max_f32 v40, v40, v44
        v_mul_f32 v100, {sK}, v40""")
        for r in range(4): s(f"v_fma_f32 v{104+r}, v{104+r}, {sK}, -v100")
        for r in range(4): s(f"v_exp_f32 v{104+r}, v{104+r}")
        s("""v_add_f32 v108, v104, v105
        v_cvt_pk_bf16_f32 v40, v104, v106
        v_cvt_pk_bf16_f32 v41, v105, v107
        ds_write2_b32 v216, v40, v41 offset1:2
        v_add_f32 v108, v108, v106
        v_add_f32 v108, v108, v107""")
        s.allred_g("v_add_f32", 108, 4)
        s(f"ds_write_b32 v217, v108 offset:{A_LX - A_MX}\ns_waitcnt lgkmcnt(0)\ns_barrier")
        s.stamp(6)
        for k in range(4): s(f"ds_read_b128 {vr(40+4*k,4)}, v219 offset:{64*k}")
        s(f"ds_read_b128 v[88:91], v218 offset:{A_LX - A_MX}\nds_read_b128 v[92:95], v218 offset:{A_LX - A_MX + 16}")
        s(f"""s_lshl_b32 s5, {sQ}, 20
        s_lshl_b32 s4, {sHL}, 8
        s_add_u32 s5, s5, s4
        s_lshl_b32 s4, s3, 15
        s_add_u32 s5, s5, s4
        s_lshl_b32 s4, s3, 10
        s_add_u32 m0, s4, {A_WUV}""")
        for u in range(4):
            s(f"buffer_load_dwordx4 v222, {M3}, s5 offen nt lds")
            if u < 3: s(f"s_add_u32 m0, m0, 8192\ns_add_u32 s5, s5, {8*32768}")
        for ks in range(4):
            s(f"s_waitcnt lgkmcnt({5-ks})")
            for t in range(4):
                s(f"v_mfma_f32_16x16x32_bf16 {vr(56+4*t,4)}, {vr(112+16*ks+4*t,4)}, {vr(40+4*ks,4)}, {vr(56+4*t,4) if ks else 0}")
        s(f"""s_waitcnt lgkmcnt(0)
        v_add_f32 v88, v88, v89
        v_add_f32 v90, v90, v91
        v_add_f32 v92, v92, v93
        v_add_f32 v94, v94, v95
        v_add_f32 v88, v88, v90
        v_add_f32 v92, v92, v94
        v_add_f32 v101, v88, v92
        v_mov_b32 v102, {sT}
        v_mov_b32 v103, {sT}
        s_cmp_eq_u32 s3, 7
        s_cselect_b64 exec, 0xffff, 0
        buffer_store_dwordx4 v[100:103], v221, {WS}, 0 offen sc1""")
        s.exec_all()
        for u in range(2):
            for t in range(2):
                d = 56 + 8 * u + 4 * t
                s(f"v_cvt_pk_bf16_f32 v{72+4*u+2*t}, v{d}, v{d+1}\nv_cvt_pk_bf16_f32 v{73+4*u+2*t}, v{d+2}, v{d+3}")
            for k in range(4): s(f"v_bfi_b32 v{72+4*u+k}, {v11}, {sT2}, v{72+4*u+k}")
            s(f"buffer_store_dwordx4 {vr(72+4*u,4)}, v220, {WS}, 0 offen offset:{64*u} sc1")
        s.stamp(7)
        def wo_dma():
            s(f"""s_mul_i32 s8, {sHL}, 147456
            s_mul_i32 s4, {sQ}, 36864
            s_add_u32 s8, s8, s4
            s_lshl_b32 s4, s3, 10
            s_add_u32 m0, s4, {A_WO}""")
            for u in range(4):
                s(f"buffer_load_dwordx4 v{223+u}, {SWO}, s8 offen nt lds\ns_add_u32 m0, m0, 8192")
            lb = s.lab("Lwo")
            s(f"s_cmp_ge_u32 s3, 4\ns_cbranch_scc1 {lb}\nbuffer_load_dwordx4 v227, {SWO}, s8 offen nt lds\n{lb}:")
        if not o["wo_late"]:
            s("s_waitcnt vmcnt(2)")
            wo_dma()
        else:
            s("s_waitcnt vmcnt(2)")
        s("s_barrier")
        for u in range(2):
            for dt in range(8):
                for t in range(2):
                    s(f"ds_read_b64_tr_b16 {vr(112+32*u+4*dt+2*t,2)}, v{228+dt} offset:{8192*u+4096*t}")
        def ld():
            s(f"""buffer_load_dwordx4 v[48:51], v237, {WS}, 0 offen sc1
            buffer_load_dwordx4 v[40:43], v236, {WS}, 0 offen sc1
            buffer_load_dwordx4 v[44:47], v236, {WS}, 0 offen offset:64 sc1""")
        def ck():
            t = s.tagcheck(list(range(40, 48)), sT2, [32, 33, 34, 35])
            s(f"v_bitop3_b32 v36, v50, v51, {sT} bitop3:0x7e\nv_and_or_b32 v{t}, v{t}, {v11}, v36"); return t
        s.poll(ld, ck)
        s.stamp(8)
        if o["wo_late"]: wo_dma()
        s("s_waitcnt lgkmcnt(0)")
        for u in range(2):
            for dt in range(8):
                s(f"v_mfma_f32_16x16x32_bf16 {vr(56+4*dt,4)}, {vr(40+4*u,4)}, {vr(112+32*u+4*dt,4)}, {vr(56+4*dt,4) if u else 0}")
        s.weights([8, 4, 2, 1])
        for dt in range(8): s.wsum(88 + dt, 56 + 4 * dt)
        for t in range(4): s(f"v_permlane32_swap_b32 v{88+t}, v{92+t}")
        for t in range(4): s(f"v_add_f32 v{88+t}, v{88+t}, v{92+t}")
        for t in range(2): s(f"v_permlane16_swap_b32 v{88+t}, v{90+t}")
        for t in range(2): s(f"v_add_f32 v{88+t}, v{88+t}, v{90+t}")
        s(f"""v_cvt_pk_bf16_f32 v88, v88, v89
        v_bfi_b32 v88, {v11}, {sT2}, v88
        buffer_store_dword v88, v238, {WS}, 0 offen sc1""")
        s.stamp(9)
        if o["wo_late"]: s("s_waitcnt vmcnt(1)")
        s("s_barrier")
        s.s5_trreads()
        def ld():
            s(f"buffer_load_dwordx4 v[40:43], v241, {WS}, 0 offen sc1\nbuffer_load_dwordx4 v[44:47], v241, {WS}, 0 offen offset:1024 sc1")
        def ck():
            t = s.tagcheck(list(range(40, 48)), sT2, [32, 33, 34, 35]); s(f"v_and_b32 v{t}, {v11}, v{t}"); return t
        s.poll(ld, ck)
        s.stamp(10)
        s("s_waitcnt lgkmcnt(0)")
        for m in range(2):
            for u in range(5):
                s(f"v_mfma_f32_16x16x32_bf16 {vr(56+4*u,4)}, {vr(40+4*m,4)}, {vr(112+4*u,4)}, {vr(56+4*u,4) if m else 0}")
        for u in range(5):
            d = 56 + 4 * u
            s(f"v_add_f32 v{d}, v{d}, v{d+1}\nv_add_f32 v{d+2}, v{d+2}, v{d+3}")
        for u in range(5):
            d = 56 + 4 * u
            s(f"v_add_f32 v{88+u}, v{d}, v{d+2}")
        s.s5_out([88, 89, 90, 91, 92])
        s("L_B3:\ns_barrier\nL_B3b:")
        s.stamp(5)
        for ks in range(4):
            s(f"ds_read_b128 {vr(40+4*ks,4)}, v219 offset:{64*ks}")
            for tt in range(2):
                for t in range(2):
                    s(f"ds_read_b64_tr_b16 {vr(112+8*ks+4*tt+2*t,2)}, v{208+tt} offset:{8192*ks+4096*t}")
        for ks in range(4):
            s(f"s_waitcnt lgkmcnt({min(15, 5*(3-ks))})")
            for tt in range(2):
                s(f"v_mfma_f32_16x16x32_bf16 {vr(56+4*tt,4)}, {vr(40+4*ks,4)}, {vr(112+8*ks+4*tt,4)}, {vr(56+4*tt,4) if ks else 0}")
        s(f"""v_cvt_pk_bf16_f32 v88, v56, v60
        v_bfi_b32 v88, {v11}, {sT2}, v88
        s_mov_b32 exec_hi, 0
        buffer_store_dword v88, v220, {WS}, 0 offen sc1""")
        s.exec_all()
        s.stamp(7)
        s("s_waitcnt vmcnt(1)\ns_barrier")
        s.stamp(9)
        s.s5_trreads()
        def ld():
            s(f"buffer_load_dwordx4 v[48:51], v237, {WS}, 0 offen sc1\nbuffer_load_dwordx4 v[40:43], v241, {WS}, 0 offen sc1")
        def ck():
            t = s.tagcheck(list(range(40, 44)), sT2, [32, 33])
            s(f"v_bitop3_b32 v36, v50, v51, {sT} bitop3:0x7e\nv_and_or_b32 v{t}, v{t}, {v11}, v36"); return t
        s.poll(ld, ck)
        s.stamp(10)
        s("s_waitcnt lgkmcnt(0)")
        for u in range(5):
            s(f"v_mfma_f32_16x16x32_bf16 {vr(56+4*u,4)}, v[40:43], {vr(112+4*u,4)}, 0")
        s.weights([2, 1])
        for u in range(5): s.wsum(88 + u, 56 + 4 * u)
        s.s5_out([88, 89, 90, 91, 92])
        s(f"""L_fin:
        s_cmp_eq_u32 s3, 4
        s_cbranch_scc0 L_exit
        s_cmp_lt_u32 {sIDX}, 36
        s_cbranch_scc0 L_exit
        s_mul_i32 s4, {sROLE}, 36
        s_add_u32 s4, s4, {sIDX}
        s_lshl_b32 s8, s4, 5
        s_lshl_b32 s4, s4, 13
        s_add_u32 s4, s4, {O5}
        s_add_u32 s6, s4, 4096
        v_lshlrev_b32 v22, 4, {vL}
        v_lshlrev_b32 v21, 3, {vJ}
        v_lshl_add_u32 v21, {vG}, 1, v21""")
        def ld():
            for u in range(8):
                s(f"buffer_load_dwordx4 {vr(40+4*u,4)}, v22, {WS}, {'s4' if u < 4 else 's6'} offen offset:{1024*(u&3)} sc1")
        def ck():
            t = s.tagcheck(list(range(40, 72)), sT, list(range(72, 88))); s(f"v_and_b32 v{t}, {vFF}, v{t}"); return t
        s.poll(ld, ck)
        for st in (16, 8, 4):
            for k in range(st): s(f"v_add_f32 v{40+k}, v{40+k}, v{40+st+k}")
        s("""v_permlane32_swap_b32 v40, v42
        v_permlane32_swap_b32 v41, v43
        v_add_f32 v40, v40, v42
        v_add_f32 v41, v41, v43
        v_permlane16_swap_b32 v40, v41
        v_add_f32 v40, v40, v41""")
        s.allred_row("v_add_f32", 40, [8, 4])
        s("v_cvt_pk_bf16_f32 v40, v40, v40")
        s.exec_mask(0x000f000f)
        s(f"buffer_store_short v40, v21, {SOUT}, s8 offen")
        s(f"""s_cmp_eq_u32 {sIDX}, 0
        s_cbranch_scc0 L_exit
        s_mov_b64 exec, 1
        v_mov_b32 v41, {sT}
        v_mov_b32 v42, 0
        s_lshl_b32 s4, {sROLE}, 8
        buffer_store_dword v41, v42, {WS}, s4 offen sc1""")
        s("L_exit:")
        if o.get("spin"):
            s(f"""s_cmp_eq_u32 s3, 3
            s_cbranch_scc0 L_nospin
            s_add_u32 s89, s89, {o['spin']}
            L_spin:
            s_memrealtime s[14:15]
            s_waitcnt lgkmcnt(0)
            s_cmp_lt_u32 s14, s89
            s_cbranch_scc1 L_spin
            L_nospin:""")
        if o["stamps"] == 2:
            s.stamp(11)
            s("s_load_dwordx2 s[4:5], s[0:1], 96\ns_waitcnt lgkmcnt(0)\ns_mov_b32 s6, 256\ns_mov_b32 s7, 0x20000\ns_mov_b64 exec, 1\nv_mov_b32 v4, 0")
            s("s_sub_u32 s90, 0, s90")
            slotsA = [0,1,2,3,4,5,7,8,10,11]; slotsB = [1,2,5,10,11]
            s(f"s_cmp_eq_u32 {sROLE}, 0\ns_cbranch_scc0 L_dbgB")
            for i, k in enumerate(slotsA):
                s(f"v_mov_b32 v{12+i}, s{90+k}\nbuffer_atomic_umax v{12+i}, v4, s[4:7], 0 offen offset:{4*i}")
            s("s_branch L_exit0\nL_dbgB:")
            for i, k in enumerate(slotsB):
                s(f"v_mov_b32 v{12+i}, s{90+k}\nbuffer_atomic_umax v{12+i}, v4, s[4:7], 0 offen offset:{4*(10+i)}")
        elif o["stamps"]:
            s.stamp(11)
            s("s_mov_b64 exec, 1\ns_lshl_b32 s4, s2, 3\ns_add_u32 s4, s4, s3\ns_lshl_b32 s4, s4, 6\ns_add_u32 s4, s4, %d\nv_mov_b32 v4, 0" % STAMP)
            for q in range(3):
                for k in range(4): s(f"v_mov_b32 v{12+4*q+k}, s{90+4*q+k}")
                s(f"buffer_store_dwordx4 {vr(12+4*q,4)}, v4, {WS}, s4 offen offset:{16*q}")
        s("L_exit0:\ns_endpgm")
        lines, n = hazard.pad(s.L)
        pr = hazard.check_branches(lines)
        assert not pr, pr
        return wrap("\n".join(lines) + "\n", 256, 512, LDS, vgpr=256, sgpr=102)


def gen(**o):
    return G(**o).build()


if __name__ == "__main__":
    opts = {}
    for a in sys.argv[2:]:
        k, v = a.split("=")
        opts[k] = int(v)
    open(sys.argv[1], "w").write(gen(**opts))
```
